```python
import torch

def _softmax(x, axis=-1):
    return torch.softmax(x, dim=axis)
def _gelu(x):
    return torch.nn.functional.gelu(x, approximate="tanh")
def _silu(x):
    return torch.nn.functional.silu(x)
def _sigmoid(x):
    return torch.sigmoid(x)
def _layernorm(x, axis=-1, eps=1e-5):
    m = x.mean(dim=axis, keepdim=True)
    v = x.var(dim=axis, keepdim=True, unbiased=False)
    return (x - m) / torch.sqrt(v + eps)
def _scatter_add(tgt, idx, src, axis=0):
    return tgt.clone().index_add_(axis, idx, src)
def _segment_sum(src, seg, n):
    out = torch.zeros((n,) + src.shape[1:], dtype=src.dtype)
    return out.index_add_(0, seg, src)
def _pad(x, pw):
    flat = tuple(v for pair in reversed(pw) for v in pair)
    return torch.nn.functional.pad(x, flat)

kernel_name = 'standalone__gqa_softmax__near_ridge'

def setup_inputs():

    _w = (lambda a: (lambda t: t.to(torch.bfloat16) if t.is_floating_point() else t)(torch.as_tensor(a)))
    B, Hq, Hkv, Sq, Sk, D = 16, 32, 32, 848, 512, 192
    return {
        "q": _w((lambda *s: torch.randn(*s, dtype=torch.bfloat16) * 0.8)(B, Hq, Sq, D)),
        "k": _w((lambda *s: torch.randn(*s, dtype=torch.bfloat16) * 0.8)(B, Hkv, Sk, D)),
        "v": _w((lambda *s: torch.randn(*s, dtype=torch.bfloat16) * 0.05)(B, Hkv, Sk, D)),
    }

def reference(q, k, v):
    B, Hq, Sq, D = q.shape
    Hkv = k.shape[1]
    rep = Hq // Hkv
    k = (lambda x, n, axis: torch.repeat_interleave(x, n, dim=axis))(k, rep, axis=1)
    v = (lambda x, n, axis: torch.repeat_interleave(x, n, dim=axis))(v, rep, axis=1)
    scale = D ** -0.5
    scores = torch.einsum("bhqd,bhkd->bhqk", q, k) * scale
    p = _softmax(scores, axis=-1)
    return torch.einsum("bhqk,bhkd->bhqd", p, v)
```

```python
from common import *
def gen(tag,second,first="dma"):
    L=[];A=L.append
    A("s_cmp_ge_u32 s2, 8"); A(f"s_cbranch_scc1 L_end{tag}")
    A("s_load_dwordx2 s[8:9], s[0:1], 40")
    A("s_load_dwordx4 s[4:7], s[0:1], 0")
    A("v_and_b32 v6, 63, v0"); A("v_lshlrev_b32 v4, 4, v6")
    A("s_waitcnt lgkmcnt(0)")
    A("s_mov_b32 s12, s4"); A("s_and_b32 s13, s5, 0xffff"); A("s_mov_b32 s14, 166723584"); A("s_mov_b32 s15, 0x20000")
    A("s_mov_b32 s16, s8"); A("s_and_b32 s17, s9, 0xffff"); A("s_mov_b32 s18, 0"); A("s_mov_b32 s19, 0x20000")
    A("s_mov_b32 s24, s8"); A("s_and_b32 s25, s9, 0xffff"); A("s_mov_b32 s26, 0x1000000"); A("s_mov_b32 s27, 0x20000")
    A("s_mul_i32 s37, s2, 651264"); A("s_lshl_b32 s38, s2, 12"); A("s_add_u32 s38, s38, 0x200000")
    A("s_mov_b32 m0, 0"); A("s_mov_b32 s20, 16"); A("s_mov_b32 s36, 0"); A("s_mov_b32 s39, 0")
    A("buffer_store_dwordx4 v[8:11], v4, s[24:27], s38 offen"); A("buffer_load_dwordx4 v[12:15], v4, s[24:27], s38 offen"); A("s_waitcnt vmcnt(0)")
    A(f"L_loop{tag}:")
    A("s_memtime s[44:45]"); A("s_waitcnt lgkmcnt(0)")
    if first=="dma": A("buffer_load_dwordx4 v4, s[12:15], s37 offen nt lds")
    else: A("buffer_load_dwordx4 v[16:19], v4, s[12:15], s37 offen nt")
    A({"oobst":"buffer_store_dwordx4 v[8:11], v4, s[16:19], s38 offen",
       "oobdma":"buffer_load_dwordx4 v4, s[16:19], s38 offen offset:1024 lds",
       "oobld":"buffer_load_dwordx4 v[12:15], v4, s[16:19], s38 offen",
       "st":"buffer_store_dwordx4 v[8:11], v4, s[24:27], s38 offen",
       "stnt":"buffer_store_dwordx4 v[8:11], v4, s[24:27], s38 offen nt",
       "hit":"buffer_load_dwordx4 v[12:15], v4, s[24:27], s38 offen",
       "hitdma":"buffer_load_dwordx4 v4, s[24:27], s38 offen offset:1024 lds"}[second])
    A("s_waitcnt vmcnt(1)")
    A("s_memtime s[46:47]"); A("s_waitcnt lgkmcnt(0)")
    A("s_waitcnt vmcnt(0)")
    A("s_memtime s[48:49]"); A("s_waitcnt lgkmcnt(0)")
    A("s_sub_u32 s40, s46, s44"); A("s_add_u32 s36, s36, s40"); A("s_sub_u32 s40, s48, s44"); A("s_add_u32 s39, s39, s40")
    A("s_add_u32 s37, s37, 16384")
    A("s_sub_u32 s20, s20, 1"); A("s_cmp_lg_u32 s20, 0"); A(f"s_cbranch_scc1 L_loop{tag}")
    A("v_cmp_eq_u32 vcc, 0, v0"); A("s_and_saveexec_b64 s[22:23], vcc"); A(f"s_cbranch_execz L_end{tag}")
    A("s_lshl_b32 s21, s2, 3"); A("v_mov_b32 v8, s21")
    A("v_mov_b32 v10, s36"); A("v_mov_b32 v11, s39")
    A("buffer_store_dwordx2 v[10:11], v8, s[24:27], 0 offen")
    A("s_waitcnt vmcnt(0)")
    A(f"L_end{tag}:"); A("s_endpgm")
    return "\n".join(x for x in L if x)
V={}
for f in ("dma","ld"):
    for s in ("oobst","oobdma","oobld","st","stnt","hit","hitdma"):
        V[f+"_"+s]=dict(second=s,first=f)
ks=[(k+"_kernel",gen(k,**v),dict(vgpr=64,agpr_off=64)) for k,v in V.items()]
build("ooo",ks)
open("ooo.list","w").write("\n".join(V.keys())+"\n")
```

```python
import re

REG_RE = re.compile(r'^(-|abs\()?([vas])(\d+)\)?$')
RANGE_RE = re.compile(r'^(-)?([vas])\[(\d+):(\d+)\]$')


def regs_of(op):
    op = op.strip()
    m = RANGE_RE.match(op)
    if m:
        return [(m.group(2), i) for i in range(int(m.group(3)), int(m.group(4)) + 1)]
    m = REG_RE.match(op)
    if m:
        return [(m.group(2), int(m.group(3)))]
    if op in ('vcc', 'exec', 'm0', 'scc'):
        return [(op, 0)]
    if op in ('vcc_lo', 'vcc_hi'):
        return [('vcc', 0)]
    if op in ('exec_lo', 'exec_hi'):
        return [('exec', 0)]
    return []


TRANS = ('v_exp_f32', 'v_rcp_f32', 'v_log_f32', 'v_rsq_f32', 'v_sqrt_f32')
SWAPS = ('v_permlane16_swap_b32', 'v_permlane32_swap_b32')
RMW = ('v_fmac_f32',)


class Inst:
    __slots__ = ('text', 'op', 'kind', 'reads', 'writes', 'tag', 'prio', 'notbefore', 'deps', 'idx', 'after',
                 'lat', 'vm_id', 'srcc', 'srcab', 'note', 'floating', 'dl', 'dlw', 'dlend', 'gap', 'lgkm', 'nb2')

    def __init__(self, text, tag=None, prio=0.0, notbefore=0, vm_id=None):
        self.text = text
        self.tag = tag
        self.prio = prio
        self.notbefore = notbefore
        self.vm_id = vm_id
        self.after = []
        self.srcc = set()
        self.srcab = set()
        self.floating = False
        self.note = None
        self.dl = self.dlend = self.gap = self.lgkm = self.nb2 = None
        self.dlw = 0.0
        self.parse()

    def parse(self):
        t = self.text.split('\n')[0].split(';')[0].strip()
        t = re.sub(r'\s+op_sel(_hi)?:\[[01,]*\]', '', t)
        t = re.sub(r'\s+offset[01]:\d+', '', t)
        parts = t.split(None, 1)
        op = parts[0]
        self.op = op
        rest = parts[1] if len(parts) > 1 else ''
        ops = [x.strip() for x in rest.split(',')] if rest else []
        last_mods = ''
        if ops:
            sp = ops[-1].split(None, 1)
            if op.startswith('s_waitcnt') or op.startswith('s_nop') or op.startswith('s_cbranch') or op.startswith('s_branch') or op == 's_call_b64':
                pass
            elif len(sp) > 1:
                ops[-1] = sp[0]
                last_mods = sp[1]
        R = set()
        W = set()
        base = op.replace('_e32', '').replace('_e64', '').replace('_dpp', '')
        if op.endswith(':'):
            self.kind = 'label'
        elif op.startswith('v_mfma'):
            self.kind = 'mfma'
            W |= set(regs_of(ops[0]))
            self.srcab = set(regs_of(ops[1])) | set(regs_of(ops[2]))
            self.srcc = set(regs_of(ops[3]))
            R |= self.srcab | self.srcc
        elif op.startswith('ds_read'):
            self.kind = 'ds'
            W |= set(regs_of(ops[0]))
            R |= set(regs_of(ops[1]))
        elif op.startswith('ds_write'):
            self.kind = 'ds'
            for o in ops:
                R |= set(regs_of(o))
        elif op.startswith('buffer_load'):
            mods = last_mods.split()
            if 'lds' in mods:
                self.kind = 'dma'
                for o in ops:
                    R |= set(regs_of(o))
                R.add(('m0', 0))
            else:
                self.kind = 'vld'
                W |= set(regs_of(ops[0]))
                for o in ops[1:]:
                    R |= set(regs_of(o))
        elif op.startswith('buffer_store'):
            self.kind = 'vst'
            ops = [o for o in ops if o != 'off']
            for o in ops:
                R |= set(regs_of(o))
        elif op.startswith('v_cmp'):
            self.kind = 'valu'
            W |= set(regs_of(ops[0]))
            for o in ops[1:]:
                R |= set(regs_of(o))
        elif base in SWAPS:
            self.kind = 'valu'
            for o in ops[:2]:
                R |= set(regs_of(o))
                W |= set(regs_of(o))
        elif op.startswith('v_readfirstlane') or op.startswith('v_readlane'):
            self.kind = 'valu'
            W |= set(regs_of(ops[0]))
            for o in ops[1:]:
                R |= set(regs_of(o))
        elif op.startswith('v_'):
            self.kind = 'trans' if base in TRANS else 'valu'
            W |= set(regs_of(ops[0]))
            start = 1
            if base in ('v_add_co_u32', 'v_addc_co_u32', 'v_sub_co_u32'):
                W |= set(regs_of(ops[1]))
                start = 2
            for o in ops[start:]:
                R |= set(regs_of(o))
            if base in RMW or 'DPPMERGE' in self.text:
                R |= set(regs_of(ops[0]))
            if base == 'v_cndmask_b32' and len(ops) == 3:
                R.add(('vcc', 0))
        elif op == 's_waitcnt':
            self.kind = 'wait'
        elif op == 's_nop':
            self.kind = 'nop'
        elif op == 's_barrier':
            self.kind = 'barrier'
        elif op.startswith('s_cbranch') or op in ('s_branch', 's_call_b64', 's_setpc_b64'):
            self.kind = 'branch'
            if 'vcc' in op:
                R.add(('vcc', 0))
            if 'scc' in op:
                R.add(('scc', 0))
            if 'exec' in op:
                R.add(('exec', 0))
        elif op == 's_endpgm' or op == 's_setprio' or op == 's_sleep':
            self.kind = 'misc'
        elif op.startswith('s_load') or op.startswith('s_memtime') or op.startswith('s_memrealtime'):
            self.kind = 'smem'
            W |= set(regs_of(ops[0]))
            for o in ops[1:]:
                R |= set(regs_of(o))
        elif op.startswith('s_cmp') or op.startswith('s_bitcmp'):
            self.kind = 'salu'
            for o in ops:
                R |= set(regs_of(o))
            W.add(('scc', 0))
        elif op.startswith('s_'):
            self.kind = 'salu'
            W |= set(regs_of(ops[0]))
            for o in ops[1:]:
                R |= set(regs_of(o))
            if base in ('s_add_u32', 's_sub_u32', 's_addc_u32', 's_subb_u32', 's_and_b32', 's_or_b32', 's_xor_b32',
                        's_lshl_b32', 's_lshr_b32', 's_and_b64', 's_or_b64', 's_add_i32', 's_sub_i32', 's_min_u32',
                        's_max_u32', 's_and_saveexec_b64', 's_andn2_b64', 's_addk_i32'):
                W.add(('scc', 0))
            if base in ('s_addc_u32', 's_subb_u32', 's_cselect_b32', 's_cselect_b64'):
                R.add(('scc', 0))
            if base == 's_addk_i32':
                R |= set(regs_of(ops[0]))
            if base == 's_and_saveexec_b64':
                W.add(('exec', 0))
                R.add(('exec', 0))
        elif op.startswith('.'):
            self.kind = 'directive'
        else:
            raise ValueError('unknown instruction: ' + self.text)
        self.reads = R
        self.writes = W

    def __repr__(self):
        return self.text


VEC_VALU = ('valu', 'trans', 'mfma')
MEM = ('ds', 'dma', 'vld', 'vst')
SCALAR = ('salu', 'wait', 'nop', 'barrier', 'branch', 'misc', 'smem')


def is_vreg(r):
    return r[0] in ('v', 'a')


def need_states(p, c):
    n = 0
    if p.kind == 'mfma':
        d = p.writes
        if c.kind == 'mfma':
            if c.srcab & d:
                n = max(n, 8)
            if c.srcc & d:
                if c.srcc != d:
                    n = max(n, 6)
            if (c.writes & d) and c.writes != d:
                n = max(n, 6)
        elif c.kind in ('valu', 'trans'):
            if (c.reads & d) or (c.writes & d):
                n = max(n, 8)
            if c.writes & p.srcc:
                n = max(n, 3)
        elif c.kind in MEM:
            if (c.reads & d) or (c.writes & d):
                n = max(n, 8)
    elif p.kind in ('valu', 'trans'):
        vw = {r for r in p.writes if is_vreg(r)}
        sw = p.writes - vw
        if c.kind == 'mfma' and (c.reads & vw):
            n = max(n, 2)
        if p.kind == 'trans' and c.kind in ('valu', 'trans', 'mfma') + MEM and (c.reads & vw):
            n = max(n, 1)
        if 'op_sel' in p.text and c.kind in ('valu', 'trans', 'mfma') + MEM and ((c.reads | c.writes) & vw):
            n = max(n, 1)
        if p.op.startswith('v_pk_') and c.kind == 'mfma':
            n = max(n, 2)
        cb = c.op.replace('_e32', '')
        if cb in SWAPS and (c.reads & vw):
            n = max(n, 2)
        if (c.op.startswith('v_readfirstlane') or c.op.startswith('v_readlane')) and (c.reads & vw):
            n = max(n, 1)
        if 'row_' in c.text and (c.reads & vw):
            n = max(n, 2)
        if sw:
            if c.kind in ('valu', 'trans') and (c.reads & sw):
                n = max(n, 2)
            if c.kind in ('dma', 'vld', 'vst') and (c.reads & sw):
                n = max(n, 5)
            if c.kind == 'branch' and (c.reads & sw):
                n = max(n, 5)
            if c.kind == 'salu' and (c.reads & sw):
                n = max(n, 4)
    elif p.kind == 'vst':
        if p.op.endswith('x4') or p.op.endswith('x3'):
            data = {r for r in p.reads if is_vreg(r)}
            if c.kind in ('valu', 'trans') and (c.writes & data):
                n = max(n, 2)
            elif c.writes & data:
                n = max(n, 1)
    elif p.kind == 'salu':
        if ('m0', 0) in p.writes and c.kind == 'dma':
            n = max(n, 1)
    return n


def states_of(i):
    if i.kind == 'nop':
        return int(i.text.split()[1]) + 1
    if i.kind in ('label', 'directive'):
        return 0
    return 1


MAX_STATES = 8


def check_hazards(seq, name=''):
    bad = []
    for j, c in enumerate(seq):
        if c.kind in ('label', 'directive', 'wait', 'nop', 'barrier'):
            continue
        dist = 0
        k = j - 1
        while k >= 0 and dist < MAX_STATES:
            p = seq[k]
            n = need_states(p, c)
            if n > dist:
                bad.append((name, k, p.text, j, c.text, n, dist))
            dist += states_of(p)
            k -= 1
    return bad


def fix_hazards(seq, history=()):
    out = []
    hist = list(history)[-24:]
    for c in seq:
        if c.kind not in ('label', 'directive', 'wait', 'nop', 'barrier'):
            ctx = hist + out[-24:]
            dist = 0
            need = 0
            k = len(ctx) - 1
            while k >= 0 and dist < MAX_STATES:
                n = need_states(ctx[k], c)
                need = max(need, n - dist)
                dist += states_of(ctx[k])
                k -= 1
            if need > 0:
                out.append(Inst('s_nop %d' % (need - 1)))
        out.append(c)
    return out


LDS_LAT = 160
LDSW = 12
STGAP = 120
WAIT_LAT = 160


def issue_time(prev_kind, prev_t, c, st):
    t = st['slot']
    k = c.kind
    if k in VEC_VALU:
        t = max(t, st['vec_free'])
        if c.op.startswith('v_pk_'):
            t = max(t, st['mfma_free'] + 12)
        if k == 'mfma':
            t = max(t, st['mfma_free'], st['mblock'])
    elif k == 'ds':
        t = max(t, st['vec_free'], st['last_valu_end'] + 8)
    elif k in MEM:
        t = max(t, st['last_valu_end'] + 4)
        if k == 'vst':
            t = max(t, st['st_free'])
    elif k == 'barrier':
        t = max(t, st['last_valu_end'])
    return t


def commit(c, t, st):
    k = c.kind
    last = st['last_kind']
    st['slot'] = t + (4 * states_of(c) if k == 'nop' else 4)
    st['last_kind'] = k
    if k == 'mfma':
        st['vec_by_mfma'] = True
    elif k not in SCALAR:
        st['vec_by_mfma'] = False
    if k == 'mfma':
        st['vec_free'] = t + 8
        st['mfma_free'] = t + 16
    elif k == 'valu' or k == 'trans':
        d = 8 if (k == 'trans' or c.op.replace('_e32', '') in SWAPS) else 4
        st['slot'] = st['vec_free'] = st['last_valu_end'] = t + d
    elif k == 'ds':
        dur = 4
        if c.op.startswith('ds_write'):
            dur = 12 if c.op == 'ds_write_b64' else 20
        st['slot'] = st['vec_free'] = t + dur
    elif k == 'vst':
        st['st_free'] = t + STGAP
        st['slot'] = t + 12
        st['vec_free'] = max(st['vec_free'], t + 20)
        st['mblock'] = t + 32
    elif k in MEM:
        st['slot'] = t + (8 if last == 'ds' else 12)
        st['vec_free'] = max(st['vec_free'], st['slot'])
    elif k == 'barrier':
        st['slot'] = t + 12
    elif k == 'branch':
        st['slot'] = t + 8


def new_state():
    return dict(slot=0, vec_free=0, mfma_free=-100, last_valu_end=-100, last_kind=None, vec_by_mfma=False, st_free=0, mblock=0)


def estimate(seq):
    st = new_state()
    t = 0
    for c in seq:
        if c.kind in ('label', 'directive'):
            continue
        t = issue_time(None, None, c, st)
        commit(c, t, st)
    return max(st['slot'], st['mfma_free'])


def build_deps(prog):
    last_w = {}
    readers = {}
    for i, c in enumerate(prog):
        c.idx = i
        deps = {}

        def add(j, lat):
            deps[j] = max(deps.get(j, 0), lat)
        for r in c.reads:
            if r in last_w:
                p = prog[last_w[r]]
                lat = 4
                if p.kind == 'mfma':
                    lat = 16 if (c.kind == 'mfma' and r in c.srcc and c.srcc == p.writes) else 40
                elif p.kind == 'ds':
                    lat = LDS_LAT
                elif p.kind == 'trans':
                    lat = 12
                elif p.kind == 'valu' and c.kind == 'mfma':
                    lat = 12
                add(last_w[r], lat)
        for r in c.writes:
            if r in last_w:
                p = prog[last_w[r]]
                add(last_w[r], 40 if (p.kind == 'mfma' and c.kind != 'mfma') else 4)
            for j in readers.get(r, ()):
                p = prog[j]
                add(j, 16 if (p.kind == 'mfma' and r in p.srcc and c.kind != 'mfma') else 4)
        for a in c.after:
            add(a.idx, 4)
        for r in c.reads:
            readers.setdefault(r, []).append(i)
        for r in c.writes:
            last_w[r] = i
            readers[r] = []
        deps.pop(i, None)
        c.deps = deps


def schedule(prog, history=(), ds_chain=False, verbose=False, urgent_ok=True, jitter=None):
    lastm = lastds = lastvm = lastst = None
    for c in prog:
        if c.kind == 'mfma':
            if c.floating:
                continue
            if lastm is not None:
                c.after.append(lastm)
            lastm = c
        elif c.kind == 'ds' and ds_chain:
            if lastds is not None:
                c.after.append(lastds)
            lastds = c
        elif c.kind in ('dma', 'vld'):
            if lastvm is not None:
                c.after.append(lastvm)
            lastvm = c
        elif c.kind == 'vst':
            if lastst is not None:
                c.after.append(lastst)
            lastst = c
    build_deps(prog)
    n = len(prog)
    succ = [[] for _ in range(n)]
    for c in prog:
        for j, lat in c.deps.items():
            succ[j].append((c.idx, lat))
    def dur(c):
        if c.kind == 'mfma':
            return 16
        if c.kind == 'trans' or c.op.replace('_e32', '') in SWAPS:
            return 8
        return 4
    nm = sum(1 for c in prog if c.kind == 'mfma')
    tail = [0] * n
    for c in reversed(prog):
        best = dur(c)
        for (s, lat) in succ[c.idx]:
            l = lat
            if c.kind == 'mfma' and prog[s].kind == 'mfma':
                l = max(l, 16)
            best = max(best, l + tail[s])
        tail[c.idx] = best
    horizon = max(tail) if tail else 0
    latest = [horizon - tail[i] for i in range(n)]
    if jitter is not None:
        rng, amp = jitter
        cls = {k: rng.uniform(-amp, amp) for k in ('valu', 'trans', 'ds')}
        latest = [latest[i] + cls.get(prog[i].kind, 0) + rng.uniform(-amp, amp) * 0.5 for i in range(n)]
    done_t = [None] * n
    mlist = [c for c in prog if c.kind == 'mfma' and not c.floating]
    remaining = set(range(n))
    npred = [len(c.deps) for c in prog]
    ready = [i for i in range(n) if npred[i] == 0]
    st = new_state()
    out = []
    ctx = list(history)[-24:]

    def states_ok(c):
        dist = 0
        need = 0
        seq = ctx
        k = len(seq) - 1
        while k >= 0 and dist < MAX_STATES:
            nn = need_states(seq[k], c)
            need = max(need, nn - dist)
            dist += states_of(seq[k])
            k -= 1
        return need

    def ready_time(c):
        t = c.notbefore
        for j, lat in c.deps.items():
            t = max(t, done_t[j] + lat)
        return t

    while remaining:
        cands = []
        for i in ready:
            c = prog[i]
            t0 = issue_time(None, None, c, st)
            t = max(t0, ready_time(c))
            cands.append((i, c, t, states_ok(c)))
        mf = [x for x in cands if x[1].kind == 'mfma']
        now = st['slot']
        fl = [x for x in mf if x[1].floating and x[3] == 0 and x[2] <= max(st['mfma_free'], st['vec_free'], now)]
        ch = [x for x in mf if not x[1].floating]
        if fl:
            mf = fl[:1]
        elif ch:
            mf = ch[:1]
        else:
            mf = sorted(mf, key=lambda x: (x[3], x[2]))[:1]
        pick = None
        if mf:
            i, c, tm, need = mf[0]
            if need == 0:
                best = None
                after_mfma = st['last_kind'] == 'mfma'
                for (j, d, t, nd) in cands:
                    if d.kind == 'mfma' or nd > 0:
                        continue
                    scal = d.kind in SCALAR
                    if scal and after_mfma and t <= now:
                        key = (-1, latest[j] + d.prio, t, j)
                        if best is None or key < best[0]:
                            best = (key, (j, d, t, nd))
                        continue
                    if scal and not after_mfma and latest[j] + d.prio > now + 64:
                        continue
                    if t > tm - 4 and t > now + 12:
                        continue
                    if d.kind in ('dma', 'vld', 'vst'):
                        if st['vec_by_mfma'] and ready_time(d) <= now + 8:
                            key = (-0.5, latest[j] + d.prio, t, j)
                            if best is None or key < best[0]:
                                best = (key, (j, d, t, nd))
                            continue
                        if not now > ready_time(d) + 160:
                            continue
                    st2 = dict(st)
                    commit(d, t, st2)
                    tm2 = max(issue_time(None, None, c, st2), ready_time(c))
                    delay = tm2 - tm
                    urgent = latest[j] + d.prio < tm - 16 * URGENT and (urgent_ok or d.prio <= -40000)
                    if delay <= 0 or (urgent and delay <= 12):
                        key = (0 if delay <= 0 else 1, latest[j] + d.prio, t, j)
                        if best is None or key < best[0]:
                            best = (key, (j, d, t, nd))
                pick = best[1] if best else mf[0]
                if FILL_LOOKAHEAD and best and st['vec_by_mfma'] and pick[1].kind in ('valu', 'ds') and pick[1].op.replace('_e32', '') not in SWAPS:
                    def second_exists(first):
                        st2 = dict(st)
                        commit(first[1], first[2], st2)
                        for (j2, d2, t2, nd2) in cands:
                            if d2.kind not in ('valu', 'ds') or nd2 > 0 or j2 == first[0]:
                                continue
                            t3 = max(issue_time(None, None, d2, st2), ready_time(d2))
                            st3 = dict(st2)
                            commit(d2, t3, st3)
                            if max(issue_time(None, None, c, st3), ready_time(c)) - tm <= 0:
                                return True
                        for (sx, lat) in succ[first[0]]:
                            d2 = prog[sx]
                            if npred[sx] == 1 and d2.kind == 'valu' and lat <= 4:
                                return True
                        return False
                    if not second_exists(pick) and latest[pick[0]] + pick[1].prio > now + FILL_SLACK:
                        alts = []
                        for x in cands:
                            j, d, t, nd = x
                            if nd > 0 or j == pick[0] or d.kind not in ('trans', 'valu', 'ds'):
                                continue
                            st2 = dict(st)
                            commit(d, t, st2)
                            if max(issue_time(None, None, c, st2), ready_time(c)) - tm > 0:
                                continue
                            if d.kind == 'trans' or second_exists(x):
                                alts.append((latest[j] + d.prio, j, x))
                        if alts:
                            pick = min(alts)[2]
            else:
                others = [x for x in cands if x[1].kind != 'mfma' and x[3] == 0]
                if others:
                    pick = min(others, key=lambda x: (x[2] > now + 8, latest[x[0]] + x[1].prio, x[2], x[0]))
                else:
                    nop = Inst('s_nop %d' % (need - 1))
                    t = st['slot']
                    commit(nop, t, st)
                    out.append(nop)
                    ctx.append(nop)
                    continue
        else:
            ok = [x for x in cands if x[3] == 0]
            if ok:
                nxt = next((m for m in mlist if done_t[m.idx] is None), None)
                anc = None
                if nxt is not None:
                    seen = set()
                    stack = [nxt.idx]
                    while stack:
                        z = stack.pop()
                        for j in prog[z].deps:
                            if done_t[j] is None and j not in seen:
                                seen.add(j)
                                stack.append(j)
                    anc = [x for x in ok if x[0] in seen]
                tmin = min(x[2] for x in ok)
                if anc and min(x[2] for x in anc) <= tmin + 64:
                    tm2 = min(x[2] for x in anc)
                    near = [x for x in anc if x[2] <= tm2 + 4]
                else:
                    near = [x for x in ok if x[2] <= tmin + 4]
                pick = min(near, key=lambda x: (latest[x[0]] + x[1].prio, x[2], x[0]))
            else:
                need = min(x[3] for x in cands)
                nop = Inst('s_nop %d' % (need - 1))
                commit(nop, st['slot'], st)
                out.append(nop)
                ctx.append(nop)
                continue
        i, c, t, nd = pick
        commit(c, t, st)
        done_t[i] = t
        out.append(c)
        ctx.append(c)
        if len(ctx) > 48:
            del ctx[:24]
        remaining.discard(i)
        ready.remove(i)
        for (s, lat) in succ[i]:
            npred[s] -= 1
            if npred[s] == 0:
                ready.append(s)
    if verbose:
        print('scheduled %d instrs, %d mfma, est %d cycles (mfma bound %d)' % (n, nm, max(st['slot'], st['mfma_free']), nm * 16))
    return out


URGENT = 1
FILL_LOOKAHEAD = False
FILL_SLACK = 24


def insert_lgkm_waits(seq, pending=(), slack=None):
    q = list(pending)
    age = {id(x): -48 * (len(q) - i) // 2 - 32 for i, x in enumerate(q)}
    out = []
    st = new_state()
    for c in seq:
        if c.kind in ('label', 'directive'):
            out.append(c)
            continue
        if c.kind == 'wait':
            m = re.search(r'lgkmcnt\((\d+)\)', c.text)
            if m:
                k = int(m.group(1))
                if len(q) > k:
                    q = q[len(q) - k:] if k else []
            out.append(c)
            commit(c, issue_time(None, None, c, st), st)
            continue
        need = -1
        for pos, d in enumerate(q):
            if d.op.startswith('ds_read'):
                if (c.reads & d.writes) or (c.writes & d.writes):
                    need = pos
            else:
                dr = {r for r in d.reads if is_vreg(r)}
            if isinstance(c.tag, dict) and d in c.tag.get('lds_after', ()):
                need = pos
        t = issue_time(None, None, c, st)
        if need >= 0:
            pos = need
            while pos + 1 < len(q) and t - age[id(q[pos + 1])] >= WAIT_LAT:
                pos += 1
            nleft = len(q) - pos - 1
            if nleft > 15:
                pos += nleft - 15
                nleft = 15
            w = Inst('s_waitcnt lgkmcnt(%d)' % nleft)
            k = len(out)
            nds = 0
            while k > 0 and out[k - 1].kind in ('valu', 'trans', 'ds') and len(out) - k < 3:
                if out[k - 1].kind == 'ds':
                    nds += 1
                k -= 1
            hoist = k > 0 and k < len(out) and out[k - 1].kind == 'mfma' and nds <= nleft
            if hoist and nds:
                young = [x for x in out[k:] if x.kind == 'ds']
                hoist = all(any(x is y for y in q[pos + 1:]) for x in young)
            if hoist:
                w = Inst('s_waitcnt lgkmcnt(%d)' % (nleft - nds))
                out.insert(k, w)
            else:
                out.append(w)
            commit(w, issue_time(None, None, w, st), st)
            q = q[pos + 1:]
            t = issue_time(None, None, c, st)
        commit(c, t, st)
        out.append(c)
        if c.kind == 'ds':
            q.append(c)
            age[id(c)] = t
    return out, q


def text_of(seq):
    lines = []
    for c in seq:
        if c.kind == 'label':
            lines.append(c.text)
        else:
            lines.append('    ' + c.text)
    return '\n'.join(lines)


def verify_lgkm(seq, name=''):
    q = []
    bad = []
    for c in seq:
        if c.kind in ('label', 'directive'):
            continue
        if c.kind == 'wait':
            m = re.search(r'lgkmcnt\((\d+)\)', c.text)
            if m:
                k = int(m.group(1))
                if len(q) > k:
                    q = q[len(q) - k:] if k else []
            continue
        for d in q:
            if d.op.startswith('ds_read') and ((c.reads & d.writes) or (c.writes & d.writes)):
                bad.append((name, d.text, c.text))
        if c.kind == 'ds' or c.kind == 'smem':
            q.append(c)
    return bad


import hashlib
import os
import subprocess

_HERE = os.path.dirname(os.path.abspath(__file__))
_BIG = 1 << 28


def _anneal_bin():
    exe = os.path.join(_HERE, 'anneal')
    src = exe + '.cpp'
    if not os.path.exists(exe) or os.path.getmtime(exe) < os.path.getmtime(src):
        subprocess.check_call(['g++', '-O2', '-o', exe + '.%d' % os.getpid(), src])
        os.replace(exe + '.%d' % os.getpid(), exe)
    return exe


def _akind(c):
    k = c.kind
    if k == 'mfma':
        return 0
    if k == 'valu':
        if c.op.startswith('v_pk_'):
            return 4
        return 3 if c.op.replace('_e32', '') in SWAPS else 1
    if k == 'trans':
        return 2
    if k == 'ds':
        if c.op.startswith('ds_read'):
            return 5
        return 6 if c.op == 'ds_write_b64' else 7
    return {'dma': 8, 'vld': 8, 'vst': 9, 'salu': 10, 'misc': 10, 'smem': 10, 'wait': 11, 'barrier': 12, 'branch': 13, 'nop': 14,
            'label': 15, 'directive': 15}[k]


def _lds_cycles(c):
    if c.kind != 'ds':
        return 0
    return {'ds_read_b128': 4, 'ds_read_b64_tr_b16': 2, 'ds_write_b64': 4, 'ds_write2st64_b64': 8}.get(c.op, 4)


def anneal_input(order, pending, pend_t, iters, seed, lat, H, skew, mult, cap, wlds, wvm, wgap, T0, T1, extl, extv):
    pos = {c.idx: i for i, c in enumerate(order)}
    L = ['%d %d %d %d %d %d %d %d %g %g %g %g %g' % (len(order), iters, seed, lat, H, skew, mult, cap, wlds, wvm, wgap, T0, T1)]
    L.append('%d %s' % (len(pending), ' '.join(str(t) for t in pend_t)))
    L.append(' '.join(str(x) for x in extl))
    L.append(' '.join(str(x) for x in extv))
    prog = sorted(order, key=lambda c: c.idx)
    written = set()
    pneed = {}
    for c in prog:
        q = [-(k + 1) for k, d in enumerate(pending) if ((c.reads | c.writes) & d.writes) - written]
        pneed[c.idx] = q
        written |= c.writes
    byidx = {c.idx: c for c in order}
    for c in order:
        deps = []
        need = list(pneed[c.idx])
        for j in c.deps:
            p = byidx[j]
            lat_ = 0
            if p.kind == 'trans' and (c.reads & p.writes):
                lat_ = 12
            if p.kind == 'ds' and p.op.startswith('ds_read') and ((c.reads | c.writes) & p.writes):
                need.append(pos[j])
            deps.append((pos[j], lat_, need_states(p, c)))
        movable = 0 if (c.kind == 'mfma' and not c.floating) or c.kind in ('label', 'directive') else 1
        nb = c.nb2 if c.nb2 is not None else 0
        L.append('%d %d %d %d %g %d %d %d %d %d %d %s %s' % (
            _akind(c), movable, nb, c.dl if c.dl is not None else _BIG, c.dlw, c.dlend if c.dlend is not None else _BIG,
            c.gap if c.gap is not None else -1, _lds_cycles(c), states_of(c) if c.kind == 'nop' else 0, len(deps), len(need),
            ' '.join('%d %d %d' % d for d in deps), ' '.join(str(x) for x in need)))
    return '\n'.join(L) + '\n'


def anneal_run(text):
    exe = _anneal_bin()
    key = hashlib.sha1((text + open(exe + '.cpp').read()).encode()).hexdigest()
    cdir = 'anneal_cache'
    os.makedirs(cdir, exist_ok=True)
    fn = os.path.join(cdir, key)
    if os.path.exists(fn):
        return open(fn).read()
    out = subprocess.run([exe], input=text, capture_output=True, text=True, check=True).stdout
    open(fn + '.%d' % os.getpid(), 'w').write(out)
    os.replace(fn + '.%d' % os.getpid(), fn)
    return out


def anneal_output(order, out):
    lines = out.strip().split('\n')
    first, cost, end, n = lines[0].split()
    seq = []
    for l in lines[1:1 + int(n)]:
        i, a, t = map(int, l.split())
        if i == -1:
            seq.append(Inst('s_waitcnt lgkmcnt(%d)' % min(a, 15)))
        elif i == -2:
            seq.append(Inst('s_nop %d' % (a - 1)))
        else:
            c = order[i]
            if c.kind == 'wait' and a >= 0:
                c.lgkm = min(a, 15)
                c.text = re.sub(r' lgkmcnt\(\d+\)', '', c.text) + ' lgkmcnt(%d)' % c.lgkm
            seq.append(c)
    ld = list(map(int, lines[1 + int(n)].split()))
    vm = list(map(int, lines[2 + int(n)].split()))
    return seq, ld, vm, float(first), float(cost), int(end)
```

```python
import argparse
import re
import sys

import asmlib
from concurrent.futures import ThreadPoolExecutor
from asmlib import (anneal_input, anneal_run, anneal_output, Inst, schedule, insert_lgkm_waits, fix_hazards, check_hazards, verify_lgkm, estimate, text_of)

NAME = 'standalone__gqa_softmax__near_ridge_kernel'
SQ, SK, D = 848, 512, 192
QHEAD = SQ * D * 2
KHEAD = SK * D * 2
TILE = 32 * D * 2
VBASE = 2 * TILE
PARK = 4 * TILE
PARKW = 4 * 6144
LDS_BYTES = PARK + 4 * PARKW
QBYTES = 512 * QHEAD
KBYTES = 512 * KHEAD

sW = 3
SRD_K, SRD_V, SRD_Q, SRD_O = 4, 8, 12, 16
sOffK, sOffV, sWK, sPk, sUO, sUQ, sInc, sP3 = 20, 21, 22, 23, 24, 25, 26, 27
sC, sThr, sTrip, sPat, sT4 = 28, 29, 30, 31, 32
sQn, sOc, sHeadQ, sMember, sPn, sParkW = 33, 34, 35, 36, 37, 38
sRet = 40
sT0, sT1, sT2, sT3 = 42, 43, 44, 45
sG3 = 46
sQa = 48
sBig = 49
sBig2 = 39
sPos = {'K': 64, 'V': 65}
sBase = {'K': 66, 'V': 67}
sRot = 68
sKH = 69
sSa = [56, 57]
sSb = [58, 59]
sOu = [84, 85, 86, 87]

vKA = [1, 2]
vVA = [3, 4, 5, 6]
vQA = [7, 8]
vPK = 9
vPQ = [10, 11]
vOG, vOR, vOW = 12, 13, 14
vNM = [16, 17, 18, 19]
LQ = [20, 24]
vX = 28
SB = [32, 64]
PB = [96, 112]
TMP = 128
RB = 136
GT = 144
OV = 160
QB = 96
FP = 192
SEL = 240


def S(b, u, kt):
    return SB[b] + (u * 2 + kt) * 4


def P(b, u):
    return PB[b] + 4 * u


def Q(u, ks):
    return QB + (u * 6 + ks) * 4


def O(u, t):
    if u < 2:
        return 'v', OV + (u * 12 + t) * 4
    return 'a', ((u - 2) * 12 + t) * 4


def Oq(u, t):
    f, i = O(u, t)
    return '%s[%d:%d]' % (f, i, i + 3)


def vr(x, n=4):
    return 'v[%d:%d]' % (x, x + n - 1)


def ar(x, n=4):
    return 'a[%d:%d]' % (x, x + n - 1)


class Opt:
    pol_kv = ''
    pol_q = 'nt'
    pol_o = 'nt'
    thr = 0x47800000
    stamps = False
    prof = False
    verbose = False
    nocheck = False
    nodma = False
    nobar = False
    nostore = False
    noq = False
    patterns = 'mix2'
    balance = True
    vlead = 6
    hoist = 3
    lds_lat = 140
    wait_lat = 140
    ldsw = 12
    stgap = 60
    tries = 12
    tries_tr = 1
    wvar = 2
    wbit = 1
    wshift = 5
    loop_align = 6
    b1 = 0.27
    b2 = 0.73
    dma_gap = 80
    x_t0 = 0.30
    x_gap = 0.08
    kr_gap = 32
    vr_gap = 24
    pace = 26.0
    pk_from = 99
    drain_prio = -45000
    fine = ''
    fine_lo = 0
    fine_hi = 100000
    rt_cycles = False
    p16 = 3
    padnop = 0
    qfix = False
    ofix = False
    kvfix = False
    rot = 0
    clus = True
    anneal = True
    an_it = 1500
    an_seed = 1
    an_lat = 150
    an_cap = 12
    an_wl = 1.0
    an_wv = 12.0
    an_t0 = 6.0
    an_t1 = 0.4
    g1 = 0.29
    g2 = 0.75
    skew = 2
    dma_dl = 5
    x14 = 0.5
    x16 = 0.5
    x17 = 0.5
    wq_t = 0.5
    relax = 0


opt = Opt()


def I(text, **kw):
    return Inst(text, **kw)


def wr(seq):
    return set().union(*[x.writes for x in seq]) if seq else set()


def k_read(kt, ks, slot):
    off = slot * TILE + kt * 6144 + (ks // 2) * 1024
    return I('ds_read_b128 %s, v%d offset:%d' % (ar(FP + 4 * (kt * 6 + ks)), vKA[ks % 2], off), tag=('kf', kt, ks))


def v_reads(t, slot):
    r = FP + 4 * t
    off = slot * TILE + (t // 4) * 1024
    return [I('ds_read_b64_tr_b16 %s, v%d offset:%d' % (ar(r, 2), vVA[t % 4], off), tag=('vf', t)),
            I('ds_read_b64_tr_b16 %s, v%d offset:%d' % (ar(r + 2, 2), vVA[t % 4], off + 6144), tag=('vf', t))]


def q_read(u, ks):
    return I('ds_read_b128 %s, v%d offset:%d' % (ar(Q(u, ks)), vQA[ks % 2], u * 6144 + (ks // 2) * 2048), tag=('qf', u, ks))


def qk_mfmas(T, sb, order='C'):
    if order == 'C':
        seq = [(kt, ks, u) for kt in range(2) for u in range(T) for ks in range(6)]
    else:
        seq = [(kt, ks, u) for u in range(T) for kt in range(2) for ks in range(6)]
    out = []
    for kt, ks, u in seq:
        d = vr(S(sb, u, kt))
        out.append(I('v_mfma_f32_16x16x32_bf16 %s, %s, %s, %s' % (d, ar(FP + 4 * (kt * 6 + ks)), ar(Q(u, ks)), d if ks else '0'),
                     tag=('qk', kt, ks, u)))
    return out


def pv_mfmas(T, pb, first):
    out = []
    for t in range(12):
        for u in range(T):
            d = Oq(u, t)
            out.append(I('v_mfma_f32_16x16x32_bf16 %s, %s, %s, %s' % (d, ar(FP + 4 * t), vr(P(pb, u)), '0' if first else d),
                         tag=('pv', t, u)))
    return out


def ts_mfmas(T, b, first):
    out = []
    for u in range(T):
        c = vr(LQ[b]) if u else ('0' if first else vr(LQ[1 - b]))
        m = I('v_mfma_f32_16x16x32_bf16 %s, %s, %s, %s' % (vr(LQ[b]), ar(SEL + 4 * u), vr(P(b, u)), c), tag=('ts', u))
        m.floating = True
        out.append(m)
    return out


def sm_pairs(T):
    allp = [(u, kt, h) for u in range(T) for kt in range(2) for h in range(2)]
    head = [(u, 0, h) for u in range(T) for h in range(2)][:opt.hoist]
    return head + [p for p in allp if p not in head]


def softmax(T, b, lo=0, hi=None):
    out = []
    for n, (u, kt, h) in enumerate(sm_pairs(T)):
        if n < lo or (hi is not None and n >= hi):
            continue
        a = S(b, u, kt) + 2 * h
        t0 = TMP + (n % 4) * 2
        out.append(I('v_fma_f32 v%d, v%d, s%d, v%d' % (a, a, sC, vNM[u])))
        out.append(I('v_fma_f32 v%d, v%d, s%d, v%d' % (a + 1, a + 1, sC, vNM[u])))
        out.append(I('v_exp_f32 v%d, v%d' % (t0, a)))
        out.append(I('v_exp_f32 v%d, v%d' % (t0 + 1, a + 1)))
        out.append(I('v_cvt_pk_bf16_f32 v%d, v%d, v%d' % (P(b, u) + 2 * kt + h, t0, t0 + 1)))
    return out


def max_init(T, b):
    out = []
    for u in range(T):
        s = [S(b, u, kt) + i for kt in range(2) for i in range(4)]
        r = vX + (u % 2) * 2
        x = r + 1
        out += [I('v_max3_f32 v%d, v%d, v%d, v%d' % (r, s[0], s[1], s[2])),
                I('v_max3_f32 v%d, v%d, v%d, v%d' % (r, r, s[3], s[4])),
                I('v_max3_f32 v%d, v%d, v%d, v%d' % (r, r, s[5], s[6])),
                I('v_max_f32 v%d, v%d, v%d' % (r, r, s[7])),
                I('v_mov_b32 v%d, v%d' % (x, r)),
                I('v_permlane32_swap_b32 v%d, v%d' % (x, r)),
                I('v_max_f32 v%d, v%d, v%d' % (r, r, x)),
                I('v_mov_b32 v%d, v%d' % (x, r)),
                I('v_permlane16_swap_b32 v%d, v%d' % (x, r)),
                I('v_max_f32 v%d, v%d, v%d' % (r, r, x)),
                I('v_mul_f32_e64 v%d, -s%d, v%d' % (vNM[u], sC, r))]
    return out


def chain_seq(seq, chain):
    for x in seq:
        if chain[0] is not None:
            x.after.append(chain[0])
        chain[0] = x


def kv_dma(kind, slot, rel):
    pol = (' ' + opt.pol_kv) if opt.pol_kv else ''
    srd, off, base = (SRD_K, sOffK, 0) if kind == 'K' else (SRD_V, sOffV, VBASE)
    out = []
    dm = []
    for c in range(3):
        out.append(I('s_add_u32 m0, s%d, %d' % (sWK, base + slot * TILE + c * 1024)))
        d = I('buffer_load_dwordx4 v%d, s[%d:%d], s%d offen%s lds' % (vPK, srd, srd + 3, off, pol), vm_id=(kind, rel))
        if not opt.nodma:
            out.append(d)
            dm.append(d)
        if c < 2 or not opt.rot:
            out.append(I('s_add_u32 s%d, s%d, %d' % (off, off, 128 if c < 2 else TILE - 256)))
    if opt.rot:
        p, b = sPos[kind], sBase[kind]
        out += [I('s_add_u32 s%d, s%d, %d' % (p, p, TILE)),
                I('s_cmp_eq_u32 s%d, s%d' % (p, sKH)),
                I('s_cselect_b32 s%d, 0, s%d' % (p, p)),
                I('s_cmp_eq_u32 s%d, s%d' % (p, sRot)),
                I('s_cselect_b32 s%d, %s, 0' % (off, 's%d' % sKH if not opt.kvfix else '0')),
                I('s_add_u32 s%d, s%d, s%d' % (b, b, off)),
                I('s_add_u32 s%d, s%d, s%d' % (off, b, p))]
    return out, dm


def vm_wait(need):
    w = I('s_waitcnt vmcnt(0)')
    w.tag = {'need': need}
    return w


def barrier(need, reads, notbefore, pub=(), free=()):
    w = vm_wait(need)
    w.notbefore = int(notbefore)
    w.prio = -100000
    b = I('s_barrier' if not opt.nobar else 's_nop 0')
    b.kind = 'barrier'
    b.after.append(w)
    if opt.anneal:
        w.after += reads
        w.reads = wr(reads)
    else:
        b.after += reads
        b.reads = wr(reads)
    b.prio = -100000
    b.note = ('bar', tuple(pub), tuple(free))
    return w, b


def frags_of(m):
    tg = m.tag
    if tg[0] == 'qk':
        return [('kf', tg[1], tg[2]), ('qf', tg[3], tg[2])]
    if tg[0] == 'pv':
        return [('vf', tg[1])]
    return []


def park_unit(chain, t, gap, rb, rel, lds_imm, m0_reg, m0_imm, so, sq, rho, st=True, ld=True, after=None):
    polq = (' ' + opt.pol_q) if opt.pol_q else ''
    polo = (' ' + opt.pol_o) if opt.pol_o else ''
    out = []
    r = None
    if st:
        r = I('ds_read_b128 %s, v%d offset:%d' % (vr(rb), vOR, lds_imm))
        r.notbefore = int(max(0, t - 200))
        r.prio = -30000
        if after is not None:
            r.after += after
        out.append(r)
        x = I('buffer_store_dwordx4 %s, v%d, s[%d:%d], s%d offen offset:%d%s' % (vr(rb), vOG, SRD_O, SRD_O + 3, so, rho * 3072, polo),
              vm_id=('st', rel))
        x.notbefore = int(t)
        x.prio = -30000
        if not opt.nostore:
            out.append(x)
    if ld and not opt.noq:
        m = I('s_add_u32 m0, s%d, %d' % (m0_reg, m0_imm))
        d = I('buffer_load_dwordx4 v%d, s[%d:%d], s%d offen%s lds' % (vPQ[rho], SRD_Q, SRD_Q + 3, sq, polq), vm_id=('Q', rel))
        if r is not None:
            d.reads = d.reads | r.writes
        elif after is not None:
            d.after += after
        d.notbefore = int(t + gap)
        d.prio = -30000
        chain_seq([m, d], chain)
        out += [m, d]
    return out


def park_loop(half, rel, chain, t0, gap):
    if not opt.clus:
        out = park_unit(chain, t0, gap, RB + 4 * half, rel, half * 1024, sPk, half * 1024, sUO, sUQ, half)
    elif half:
        a = park_unit(chain, t0, gap, RB, rel, 0, sPk, 0, sUO, sUQ, 0)
        b = park_unit(chain, t0, gap, RB + 4, rel, 1024, sPk, 1024, sUO, sUQ, 1)
        for x in a:
            if x.kind == 'dma':
                x.after += [y for y in b if y.kind == 'vst']
        out = [x for x in a + b if x.kind in ('ds', 'vst')] + [x for x in a + b if x.kind not in ('ds', 'vst')]
    else:
        out = []
    if half:
        upd = [I('s_bitcmp1_b32 s%d, 0' % sTrip),
               I('s_cselect_b32 s%d, s%d, 128' % (sInc, sBig)),
               I('s_cselect_b32 s%d, s%d, 2048' % (sP3, sBig2)),
               I('s_add_u32 s%d, s%d, %s' % (sUO, sUO, 's%d' % sInc if not opt.ofix else '0')),
               I('s_add_u32 s%d, s%d, s%d' % (sUQ, sUQ, sInc)),
               I('s_add_u32 s%d, s%d, s%d' % (sPk, sPk, sP3))]
        chain_seq(upd, chain)
        out += upd + [I('v_add_u32 v%d, s%d, v%d' % (vOR, sP3, vOR))]
    return out


def park_static(pairs, rel, chain, t0, gap, vor_cur, so, sq, uo_cur, after=None):
    out = []
    k = 0
    for (u, c, st, ld) in pairs:
        delta = u * 6144 + c * 128 - uo_cur
        sc = []
        a, b = so, sq
        if delta:
            a, b = sSa[k & 1], sSb[k & 1]
            if st:
                sc.append(I('s_add_u32 s%d, s%d, %d' % (a, so, delta & 0xffffffff)))
            if ld:
                sc.append(I('s_add_u32 s%d, s%d, %d' % (b, sq, delta & 0xffffffff)))
        chain_seq(sc, chain)
        out += sc
        for rho in range(2):
            lo = u * 6144 + c * 2048 + rho * 1024
            aft = after(u, c) if after else None
            out += park_unit(chain, t0 + (2 * k + rho) * 2 * gap, gap, RB + 4 * rho, rel, lo - vor_cur, sParkW, lo, a, b, rho, st, ld, aft)
        k += 1
    return out


TRAMP = []


def site(T, b, name):
    if opt.nocheck:
        return []
    TRAMP.append((name, T, b))
    c = I('v_cmp_lt_f32 vcc, s%d, v%d' % (sThr, LQ[b]))
    c.prio = -100000
    x = I('s_cbranch_vccnz L_rs_%s\nL_ret_%s:' % (name, name))
    x.prio = -100000
    return [c, x]


def iteration(n, Tpv, Tsm, Tqk, name, first_pv=False, first_sm=False, park=None, qread=0, t0=0, H=None, chain=None,
              dma_k=True, dma_v=True, bar1=True, bar2=True, early=True, tail=None, shift=0, need2=(), mpace=None, hoist=True,
              mid=(), park2=None, prev=(), fixbar=True):
    b = n & 1
    nb = 1 - b
    chain = chain if chain is not None else [None]
    H = H if H is not None else 16 * (12 * Tpv + Tsm + 12 * Tqk)
    sh = 16 * shift if not opt.anneal else 0
    nm_ = 12 * Tpv + Tsm + 12 * Tqk
    regular = Tpv and Tqk and fixbar
    ga = int(round(opt.g1 * 25 * Tpv)) - shift
    gb = int(round(12.5 * Tpv + (opt.g2 - 0.5) * 25 * Tqk)) - shift
    prog = []
    if first_sm:
        prog += max_init(Tsm, b)
        prog += softmax(Tsm, b)
    elif Tsm:
        prog += softmax(Tsm, b, lo=opt.hoist)
    pv = pv_mfmas(Tpv, nb, first_pv) if Tpv else []
    qk = qk_mfmas(Tqk, nb) if Tqk else []
    ts = ts_mfmas(Tsm, b, first_sm) if Tsm else []
    if mpace:
        for j, m in enumerate(pv + qk):
            m.notbefore = int(t0 + mpace * j)
    vre = []
    if Tpv:
        for t in range(opt.vlead, 12):
            vre += v_reads(t, nb)
        for j, r in enumerate(vre):
            r.note = ('rd', 'V', n - 1)
            r.after += [x for x in prev if x.kind == 'barrier'][-1:]
            r.prio = -2000
            r.notbefore = int(t0 + j * 8)
    qre = [q_read(u, ks) for u in range(qread) for ks in range(6)]
    prog += vre
    if qread:
        prog.append(I('v_xor_b32 v%d, 64, v%d' % (vQA[1], vQA[0])))
    lateq = [r for r in qre if r.tag[1] == 3 and r.tag[2] >= 2 and not opt.noq]
    prog += [r for r in qre if r not in lateq]
    tb1 = t0 + H * opt.b1 - sh
    tb2 = t0 + H * opt.b2 - sh
    kre = [k_read(kt, ks, nb) for kt in range(2) for ks in range(6)] if Tqk else []
    for r in kre:
        r.note = ('rd', 'K', n + 1)
    B1 = None
    if bar1:
        w1, B1 = barrier([[('K', n + 1), ('V', n - 1), ('K', n), ('V', n - 2)][opt.relax if n >= 2 else 0]], vre, tb1,
                         pub=[('K', n + 1)], free=[('V', n - 1)])
        if regular:
            B1.gap = ga
        chain_seq([w1], chain)
        prog += [w1, B1]
        for r in kre:
            r.after.append(B1)
    if dma_v:
        d, dm = kv_dma('V', nb, n + 1)
        chain_seq(d, chain)
        for j, x in enumerate(dm):
            x.after.append(B1)
            x.notbefore = int(tb1 + 32 + j * opt.dma_gap)
            x.prio = -60000
            if regular:
                x.dl, x.dlw = 16 * (ga + shift + 2 + opt.dma_dl * (j + 1)), 0.05
        prog += d
    if lateq:
        wq = vm_wait([('Q', 14)])
        wq.notbefore = int(t0 + H * opt.wq_t)
        wq.prio = -100000
        chain_seq([wq], chain)
        for r in lateq:
            r.after.append(wq)
        prog += [wq] + lateq
    if park is not None:
        prog += park(chain, t0 + H * opt.x_t0 + 3 * opt.dma_gap, H * opt.x_gap)
    placed = set()
    seq = []
    for m in pv:
        seq.append(m)
        t, u = m.tag[1], m.tag[2]
        if u == Tpv - 1 and kre:
            seq.append(kre[t])
            placed.add(t)
    seq += [r for j, r in enumerate(kre) if j not in placed]
    for j, r in enumerate(kre):
        r.notbefore = int(tb1 + (j * opt.kr_gap if j >= 6 else j * 8))
    prog += seq + list(mid) + qk + ts
    br = site(Tsm, b, name) if (Tsm and not first_sm) else []
    for x in br:
        x.after += pv + ts
    prog += br
    if Tqk and hoist:
        nxt = softmax(Tqk, nb, lo=0, hi=opt.hoist)
        for x in nxt:
            x.after += br[-1:]
        prog += nxt
    if bar2:
        w2, B2 = barrier([[('V', n), ('K', n + 1), ('V', n - 1), ('K', n)][opt.relax if n >= 2 and Tqk else 0]] + list(need2), kre, tb2,
                         pub=[('V', n)], free=[('K', n + 1)])
        if regular:
            B2.gap = gb
        chain_seq([w2], chain)
        prog += [w2, B2]
        if dma_k:
            d, dm = kv_dma('K', nb, n + 3)
            chain_seq(d, chain)
            for j, x in enumerate(dm):
                x.after.append(B2)
                x.notbefore = int(tb2 + 32 + j * opt.dma_gap)
                x.prio = -60000
            prog += d
        if park2 is not None:
            prog += park2(chain, tb2 + 3 * opt.dma_gap, H * opt.x_gap * opt.x16)
        if early:
            last = B2
            for t in range(opt.vlead):
                for j, r in enumerate(v_reads(t, b)):
                    r.after.append(last)
                    r.note = ('rd', 'V', n)
                    r.dlend = 16 * Tsm * t - opt.an_lat
                    last = r
                    r.prio = -(t0 + H + 400) + 16 * t
                    r.notbefore = int(tb2 + (2 * t + j) * opt.vr_gap)
                    prog.append(r)
    if tail:
        for x in tail:
            x.prio = -90000
        tail[0].after += br[-1:]
        chain_seq(tail, chain)
        prog += tail
    return prog


def drain(T, direct=False):
    pol = (' ' + opt.pol_o) if opt.pol_o else ''
    out = []
    l = LQ[1]
    inv = [GT + 8 + 2 * u for u in range(4)] if opt.pk_from < 12 else [GT + 12 + u for u in range(4)]
    x0 = inv[0]
    wa = [vOW, 0, 15, vQA[1]]
    out.append(I('v_mov_b32 v%d, v%d' % (x0 + 1, l)))
    out.append(I('v_mov_b32 v%d, v%d' % (x0, l)))
    out.append(I('v_permlane16_swap_b32 v%d, v%d' % (x0, x0 + 1)))
    out.append(I('v_rcp_f32 v%d, v%d' % (inv[0], x0)))
    for u in range(1, T):
        out.append(I('v_rcp_f32 v%d, v%d' % (inv[u], l + u)))
    for i in range(1, 4):
        out.append(I('v_xor_b32 v%d, %d, v%d' % (wa[i], 32 * i, vOW)))
    prev = None
    stores = []
    nx = 0
    acc_tmp = [GT, GT + 4] + ([GT + 8] if opt.pk_from >= 12 else []) + ([TMP, TMP + 4] if direct else [])
    for t in range(12):
        c, tt = t // 4, t % 4
        for u0 in range(0, T, 2):
            pks = []
            for u in range(u0, min(u0 + 2, T)):
                fl, o0 = O(u, t)
                if fl == 'a':
                    x = acc_tmp[nx % len(acc_tmp)]
                    nx += 1
                    for i in range(4):
                        out.append(I('v_accvgpr_read_b32 v%d, a%d' % (x + i, o0 + i)))
                else:
                    x = o0
                if t >= opt.pk_from:
                    for i in (0, 2):
                        out.append(I('v_pk_mul_f32 v[%d:%d], v[%d:%d], v[%d:%d] op_sel_hi:[1,0]' %
                                     (x + i, x + i + 1, x + i, x + i + 1, inv[u], inv[u] + 1)))
                else:
                    for i in range(4):
                        out.append(I('v_mul_f32 v%d, v%d, v%d' % (x + i, x + i, inv[u])))
                out.append(I('v_cvt_pk_bf16_f32 v%d, v%d, v%d' % (x, x, x + 1)))
                out.append(I('v_cvt_pk_bf16_f32 v%d, v%d, v%d' % (x + 1, x + 2, x + 3)))
                pks.append(x)
            o5 = (u0 * 6144 + c * 2048) // 512
            if len(pks) == 2:
                w = I('ds_write2st64_b64 v%d, v[%d:%d], v[%d:%d] offset0:%d offset1:%d' %
                      (wa[tt], pks[0], pks[0] + 1, pks[1], pks[1] + 1, o5, o5 + 12))
            else:
                w = I('ds_write_b64 v%d, v[%d:%d] offset:%d' % (wa[tt], pks[0], pks[0] + 1, o5 * 512))
            w.prio = opt.drain_prio
            w.tag = ('ow', t, u0)
            if prev is not None:
                w.after.append(prev)
            prev = w
            out.append(w)
        if direct and tt == 3:
            k = 0
            for u in range(T):
                for rho in range(2):
                    rb = [RB, RB + 4, SB[0], SB[0] + 4, SB[0] + 8, SB[0] + 12, SB[0] + 16, SB[0] + 20][k % 8]
                    k += 1
                    r = I('ds_read_b128 %s, v%d offset:%d' % (vr(rb), vOR, u * 6144 + c * 2048 + rho * 1024))
                    r.prio = opt.drain_prio
                    r.after.append(prev)
                    prev = r
                    st = I('buffer_store_dwordx4 %s, v%d, s[%d:%d], s%d offen offset:%d%s' %
                           (vr(rb), vOG, SRD_O, SRD_O + 3, sOu[u], rho * 3072 + c * 128, pol), vm_id=('st', 'end'))
                    out += [r, st]
    return out


def qoff_calc(dst):
    o = []
    A = lambda t: o.append(I(t))
    A('s_lshl_b32 s%d, s%d, 1' % (sT0, sPn))
    A('s_lshr_b32 s%d, s%d, s%d' % (sT0, sPat, sT0))
    A('s_xor_b32 s%d, s%d, s%d' % (sT0, sT0, sMember))
    A('s_and_b32 s%d, s%d, 3' % (sT0, sT0))
    A('s_mul_i32 s%d, s%d, 3' % (sT1, sW))
    A('s_lshl_b32 s%d, s%d, 2' % (sT2, sW))
    A('s_mov_b32 s%d, 1' % sT4)
    A('s_add_u32 s%d, s%d, 17' % (sT3, sT1))
    A('s_cmp_eq_u32 s%d, 0' % sW)
    A('s_cselect_b32 s%d, 16, s%d' % (sT3, sT3))
    A('s_cselect_b32 s%d, 1, 0' % dst)
    A('s_cmp_eq_u32 s%d, 1' % sT0)
    A('s_cselect_b32 s%d, s%d, s%d' % (sT2, sT3, sT2))
    A('s_cselect_b32 s%d, s%d, s%d' % (sT4, dst, sT4))
    A('s_add_u32 s%d, s%d, 29' % (sT3, sT1))
    A('s_cmp_eq_u32 s%d, 2' % sT0)
    A('s_cselect_b32 s%d, s%d, s%d' % (sT2, sT3, sT2))
    A('s_cselect_b32 s%d, 0, s%d' % (sT4, sT4))
    A('s_add_u32 s%d, s%d, 41' % (sT3, sT1))
    A('s_cmp_eq_u32 s%d, 3' % sT0)
    A('s_cselect_b32 s%d, s%d, s%d' % (sT2, sT3, sT2))
    A('s_cselect_b32 s%d, 0, s%d' % (sT4, sT4))
    A('s_mul_i32 s%d, s%d, 6144' % (sT2, sT2))
    A('s_add_u32 s%d, s%d, s%d' % (dst, sHeadQ, sT2))
    return o


def pass_setup(Told):
    o = []
    A = lambda t: o.append(I(t))
    if Told:
        A('s_add_u32 s%d, s%d, 128' % (sUO, sOc))
        A('s_add_u32 s%d, s%d, %d' % (SRD_O + 2, sOc, Told * 6144))
        A('s_mov_b32 s%d, s%d' % (sOc, sQn))
    A('s_add_u32 s%d, s%d, 1' % (sPn, sPn))
    A('s_add_u32 s%d, s%d, %d' % (sHeadQ, sHeadQ, QHEAD))
    o += qoff_calc(sQn)
    A('s_mul_i32 s%d, s%d, 6144' % (sT0, sT4))
    A('s_add_u32 s%d, s%d, %d' % (sT0, sT0, 3 * 6144))
    A('s_add_u32 s%d, s%d, s%d' % (sT0, sT0, sQn))
    A('s_cmp_ge_u32 s%d, 8' % sPn)
    A('s_cselect_b32 s%d, 0, s%d' % (SRD_Q + 2, sT0))
    A('s_add_u32 s%d, s%d, 128' % (sUQ, sQn))
    if opt.qfix:
        A('s_mul_i32 s%d, s%d, 24576' % (sUQ, sW))
        A('s_mov_b32 s%d, %d' % (SRD_Q + 2, QBYTES))
    if opt.ofix and Told:
        A('s_lshl_b32 s%d, s2, 2' % sUO)
        A('s_add_u32 s%d, s%d, s%d' % (sUO, sUO, sW))
        A('s_mul_i32 s%d, s%d, 6144' % (sUO, sUO))
        A('s_add_u32 s%d, s%d, 128' % (sUO, sUO))
        A('s_mov_b32 s%d, %d' % (SRD_O + 2, QBYTES))
    A('s_add_u32 s%d, s%d, 2048' % (sPk, sParkW))
    A('s_mov_b32 s%d, 0' % sTrip)
    return o


VOR_END = 2048 + 3 * 6144
UO_END = 128 + 3 * 6144


def tail_pairs(Tn):
    return lambda ch, t, g: park_static([(3, 1, True, Tn == 4), (3, 2, True, Tn == 4)], 14, ch, t, g * opt.x14, VOR_END, sUO, sUQ, UO_END)


def transition(T, Tn, nm):
    parts = []
    parts.append(('s', iteration(14, T, T, T, nm + 'a', need2=[('Q', 13)], park=tail_pairs(Tn)), 2))
    parts.append(('s', iteration(15, T, T, Tn, nm + 'b', qread=Tn, hoist=False), 2))
    chain = [None]
    su = pass_setup(T)
    chain_seq(su, chain)
    H0 = int(opt.pace * (12 * T + 13 * Tn))
    dr = drain(T)
    ow = {}
    for x in dr:
        if isinstance(x.tag, tuple) and x.tag[0] == 'ow':
            ow[x.tag[1:]] = x
    aft = lambda u, c: [ow[(4 * c + 3, u & ~1)]] if u < T else []
    reset = [I('v_subrev_u32 v%d, %d, v%d' % (vOR, VOR_END, vOR))]
    p16 = [(u, 0, u < T, True) for u in range(opt.p16)]
    p17 = [(u, 0, u < T, True) for u in range(opt.p16, 4)]
    a = iteration(16, T, Tn, Tn, nm + 'c', first_sm=True, chain=chain, H=H0, mpace=opt.pace, mid=dr, fixbar=False,
                  park2=(lambda ch, t, g: park_static(p16, 16, ch, t, g, 0, sUO, sUQ, 128, aft)) if p16 else None)
    H1 = int(opt.pace * 12 * Tn + 16 * 13 * Tn)
    c = iteration(17, Tn, Tn, Tn, nm + 'd', first_pv=True, chain=chain, t0=H0, H=H1, prev=a, fixbar=False,
                  park=lambda ch, t, g: park_static(p17, 17, ch, t, g * opt.x17, 0, sUO, sUQ, 128, aft))
    fin = [I('v_add_u32 v%d, 2048, v%d' % (vOR, vOR))]
    parts.append(('s', su + reset + a + c + fin, 3))
    return parts


def ending(T, nm):
    parts = []
    parts.append(('s', iteration(14, T, T, T, nm + 'a', dma_k=False, need2=[('Q', 13)], park=tail_pairs(3)), 2))
    parts.append(('s', iteration(15, T, T, 0, nm + 'b', dma_k=False, dma_v=False, bar1=False, H=16 * 13 * T + 4 * 30 * T), 2))
    su = [I('s_add_u32 s%d, s%d, %d' % (sOu[u], sOc, u * 6144)) for u in range(T)]
    su.append(I('s_add_u32 s%d, s%d, %d' % (SRD_O + 2, sOc, T * 6144)))
    su.append(I('v_subrev_u32 v%d, %d, v%d' % (vOR, VOR_END, vOR)))
    for x in su:
        x.prio = -200000
    a = iteration(16, T, 0, 0, nm + 'c', dma_k=False, dma_v=False, bar1=False, bar2=False, mpace=opt.pace)
    parts.append(('s', su + a + drain(T, direct=True), 3))
    return parts


def q_tile_dma(u, chain):
    pol = (' ' + opt.pol_q) if opt.pol_q else ''
    out = []
    dm = []
    for c in range(3):
        out.append(I('s_add_u32 s%d, s%d, %d' % (sQa, sOc, u * 6144 + c * 128)))
        for rho in range(2):
            out.append(I('s_add_u32 m0, s%d, %d' % (sParkW, u * 6144 + c * 2048 + rho * 1024)))
            d = I('buffer_load_dwordx4 v%d, s[%d:%d], s%d offen%s lds' % (vPQ[rho], SRD_Q, SRD_Q + 3, sQa, pol), vm_id=('Q0', u))
            out.append(d)
            dm.append(d)
    chain_seq(out, chain)
    return out, dm


def start_pre(T):
    o = []
    d, dm = kv_dma('K', 0, 0)
    o += d
    for u in range(2):
        d, dm = q_tile_dma(u, [None])
        for x in d:
            x.after = []
        o += d
    o += late_addr()
    o += list(barrier([('K', 0)], [], 0, pub=[('K', 0)]))
    return o


def start_qk(T):
    chain = [None]
    prog = []
    kre = [k_read(kt, ks, 0) for kt in range(2) for ks in range(6)]
    for r in kre:
        r.prio = -200000
        r.note = ('rd', 'K', 0)
    prog += kre
    qk = qk_mfmas(T, 0, 'U')
    seq = [('q', u) for u in range(2, T)] + [('K', 1, 1), ('V', 0, 0), ('V', 1, 1)]

    def later(k):
        if k >= len(seq):
            return [], []
        it = seq[k]
        if it[0] == 'q':
            return q_tile_dma(it[1], chain)
        d, dm = kv_dma(it[0], it[1], it[2])
        chain_seq(d, chain)
        return d, dm
    prev = None
    nxt = 0
    issued = {}
    for u in range(T):
        w = vm_wait([('Q0', u)])
        w.prio = -100000
        w.after += prev if prev is not None else kre
        w.after += issued.get(u, [])
        prog.append(w)
        for _ in range(1 if u < T - 1 else 3):
            d, dm = later(nxt)
            nxt += 1
            for x in dm:
                x.after.append(w)
                if x.vm_id[0] == 'Q0':
                    issued.setdefault(x.vm_id[1], []).append(x)
            for x in d:
                x.prio = -190000
            prog += d
        rd = [q_read(u, ks) for ks in range(6)]
        for r in rd:
            r.after.append(w)
            r.prio = -95000
        prog += rd
        mine = [m for m in qk if m.tag[3] == u]
        prog += mine
        prev = mine[-1:]
    assert nxt >= len(seq)
    return prog


def start_parts(T, nm):
    parts = [('r', start_pre(T)), ('g', start_qk(T))]
    chain = [None]
    w, b = barrier([('K', 1)], [], 0, pub=[('K', 1)], free=[('K', 0)])
    d, dm = kv_dma('K', 0, 2)
    parts.append(('r', [w, b]))
    su = pass_setup(0)
    chain_seq(d + su, chain)
    for j, x in enumerate(dm):
        x.notbefore = 100 + j * opt.dma_gap
        x.prio = -60000
    H = 16 * 13 * T + 4 * 44 * T
    parts.append(('s', d + su + iteration(0, 0, T, T, nm + 'a', first_sm=True, bar1=False, dma_v=False, chain=chain, H=H)))
    parts.append(('s', iteration(1, T, T, T, nm + 'b', first_pv=True,
                                   park=lambda ch, t, g: park_static([(u, 0, False, True) for u in range(4)], 1, ch, t, g * 0.25, 0, sUO, sUQ, 128))))
    return parts


def rare_code(T, b):
    o = []
    A = lambda t: o.append(I(t))
    A('L_rare%d_%d:' % (T, b))
    A('s_nop 15')
    r, x, dl, f = vX, vX + 1, vX + 2, vX + 3
    lo = LQ[1 - b]
    for u in range(T):
        s = [S(b, u, kt) + i for kt in range(2) for i in range(4)]
        A('v_max3_f32 v%d, v%d, v%d, v%d' % (r, s[0], s[1], s[2]))
        A('v_max3_f32 v%d, v%d, v%d, v%d' % (r, r, s[3], s[4]))
        A('v_max3_f32 v%d, v%d, v%d, v%d' % (r, r, s[5], s[6]))
        A('v_max_f32 v%d, v%d, v%d' % (r, r, s[7]))
        A('v_mov_b32 v%d, v%d' % (x, r))
        A('v_permlane32_swap_b32 v%d, v%d' % (x, r))
        A('v_max_f32 v%d, v%d, v%d' % (r, r, x))
        A('v_mov_b32 v%d, v%d' % (x, r))
        A('v_permlane16_swap_b32 v%d, v%d' % (x, r))
        A('v_max_f32 v%d, v%d, v%d' % (r, r, x))
        A('v_max_f32 v%d, 0, v%d' % (dl, r))
        A('v_sub_f32 v%d, v%d, v%d' % (vNM[u], vNM[u], dl))
        A('v_sub_f32 v%d, 0, v%d' % (f, dl))
        A('v_exp_f32 v%d, v%d' % (f, f))
        A('v_mul_f32 v%d, v%d, v%d' % (lo + u, lo + u, f))
        if u == 0:
            A('v_cndmask_b32_e64 v%d, v%d, 0, s[%d:%d]' % (lo, lo, sG3, sG3 + 1))
        for t in range(12):
            fl, o0 = O(u, t)
            if fl == 'v':
                for i in range(4):
                    A('v_mul_f32 v%d, v%d, v%d' % (o0 + i, o0 + i, f))
                continue
            for i in range(4):
                A('v_accvgpr_read_b32 v%d, a%d' % (TMP + 4 + i, o0 + i))
            for i in range(4):
                A('v_mul_f32 v%d, v%d, v%d' % (TMP + 4 + i, TMP + 4 + i, f))
            for i in range(4):
                A('v_accvgpr_write_b32 a%d, v%d' % (o0 + i, TMP + 4 + i))
        for kt in range(2):
            for h in range(2):
                a = S(b, u, kt) + 2 * h
                A('v_sub_f32 v%d, v%d, v%d' % (a, a, dl))
                A('v_sub_f32 v%d, v%d, v%d' % (a + 1, a + 1, dl))
                A('v_exp_f32 v%d, v%d' % (TMP, a))
                A('v_exp_f32 v%d, v%d' % (TMP + 1, a + 1))
                A('v_cvt_pk_bf16_f32 v%d, v%d, v%d' % (P(b, u) + 2 * kt + h, TMP, TMP + 1))
    o += ts_mfmas(T, b, False)
    A('s_nop 15')
    A('s_setpc_b64 s[%d:%d]' % (sRet, sRet + 1))
    return fix_hazards(o)


class Blk:
    def __init__(self, name, seq):
        self.name = name
        self.seq = seq


PATTERNS = {'alt': [170] * 8, 'mix': [116, 195, 57, 212, 178, 209, 170, 170], 'mix2': [116, 195, 195, 57, 212, 178, 209, 116]}
FINE = [50, 52, 54, 88, 90, 92, 94, 96, 98, 100]


def role_words():
    out = []
    for g, pat in enumerate(PATTERNS[opt.patterns]):
        cnt = [g & 1, (g >> 1) & 1]
        wd = 0
        for n in range(8):
            hi = (pat >> n) & 1
            lo = (cnt[hi] & 1) if opt.balance else 0
            cnt[hi] += 1
            wd |= (2 * hi + lo) << (2 * n)
        out.append(wd)
    return out


def prof_mark(k):
    return [I('s_memtime s[92:93]'), I('s_waitcnt lgkmcnt(0)'), I('s_sub_u32 s95, s92, s94'),
            I('s_add_u32 s%d, s%d, s95' % (50 + k, 50 + k)), I('s_mov_b32 s94, s92')]


def rt_mark(extra=0):
    return [I('s_memtime s[96:97]' if opt.rt_cycles else 's_memrealtime s[96:97]'), I('s_waitcnt lgkmcnt(0)'), I('v_mov_b32 v31, s96'),
            I('s_lshl_b32 s95, s%d, 2' % sPn), I('s_add_u32 s95, s95, s98'), I('s_add_u32 s95, s95, %d' % extra),
            I('buffer_store_dword v31, off, s[80:83], s95', vm_id=('prof', 0))]


def clone_prog(prog):
    m = {}
    for x in prog:
        y = Inst(x.text, tag=x.tag, prio=x.prio, notbefore=x.notbefore, vm_id=x.vm_id)
        y.dl, y.dlw, y.dlend, y.gap, y.nb2 = x.dl, x.dlw, x.dlend, x.gap, x.nb2
        y.kind, y.reads, y.writes, y.floating, y.note = x.kind, set(x.reads), set(x.writes), x.floating, x.note
        m[id(x)] = y
    for x in prog:
        m[id(x)].after = [m[id(a)] for a in x.after if id(a) in m]
    return [m[id(x)] for x in prog]


def canon_pending():
    pend = []
    for t in range(opt.vlead):
        pend += v_reads(t, 0)
    return pend


def search_schedule(p, hist, tries):
    import random
    best = None
    for k in range(tries):
        q = clone_prog(p)
        s = schedule(q, history=hist, urgent_ok=False, jitter=None if k == 0 else (random.Random(1000 + k), 16 + 8 * (k % 8)))
        w, _ = insert_lgkm_waits(s, pending=canon_pending())
        e = estimate(fix_hazards(w, history=hist) + w[:12])
        if best is None or e < best[0]:
            best = (e, s)
    return best[1]


def anneal_part(p, hist, name, ext=None, skew=0, mult=4):
    order = [x for x in schedule(p, history=hist, urgent_ok=False) if x.kind != 'nop']
    pvs = [x for x in order if x.kind == 'mfma' and x.tag[0] == 'pv']
    pend = []
    pt = []
    first_reads = [x for x in p if x.kind == 'ds' and x.tag == ('vf', 0)]
    if pvs and not (first_reads and p.index(first_reads[0]) < p.index(pvs[0])):
        T = 1 + max(x.tag[2] for x in pvs[:4])
        pend = canon_pending()
        n = len(pend)
        pt = [min(16 * T * (j // 2) - opt.an_lat, -4 * (n - j)) for j in range(n)]
    H = max(1, sum(1 for x in order if x.kind == 'mfma'))
    extl, extv = ext if ext else ([0] * H, [0] * H)
    txt = anneal_input(order, pend, pt, opt.an_it * len(order), opt.an_seed, opt.an_lat, H, skew, mult, opt.an_cap, opt.an_wl, opt.an_wv,
                       40.0, opt.an_t0, opt.an_t1, extl, extv)
    seq, ld, vm, first, cost, end = anneal_output(order, anneal_run(txt))
    if opt.verbose:
        print('anneal %-9s %4d instrs %3d mfma: cost %.0f -> %.0f, end %d' % (name, len(order), H, first, cost, end), file=sys.stderr)
    return seq, ld, vm


def chain_blocks(parts, tries=1, name='', ext=None, skew=0, mult=4):
    out = []
    k = 0
    for part in parts:
        kind, p = part[0], part[1]
        if kind == 's' and opt.anneal:
            seq, ld, vm = anneal_part(p, out[-24:], name + str(k), ext.get(k) if ext else None, skew, mult)
            if ext is not None:
                a, b = ext.get(k, ([0] * len(ld), [0] * len(ld)))
                ext[k] = ([x + mult * y for x, y in zip(a, ld)], [x + y for x, y in zip(b, vm)])
            out += seq
            k += 1
        elif kind == 's' or kind == 'g':
            if tries > 1:
                out += search_schedule(p, [x for x in out[-24:]], tries)
            else:
                out += schedule(p, history=[x for x in out[-24:]], verbose=opt.verbose, urgent_ok=False)
        else:
            out += p
        if kind != 'r' and opt.prof and len(part) > 2:
            out += prof_mark(part[2])
    return out


def NW():
    return opt.wvar if opt.wshift else 1


def build():
    pro = []
    A = lambda t, **kw: pro.append(I(t, **kw))
    prologue(A, pro)
    pro.append(I('s_cmp_eq_u32 s%d, 0' % sT4))
    pro.append(I('s_cbranch_scc1 L_start3'))
    blocks = {}
    jobs = []
    for T in (4, 3):
        nm = 'start%d' % T
        parts = [('r', [I('L_%s:' % nm)])] + start_parts(T, nm) + [
                 ('r', (prof_mark(0) if opt.prof else []) + [I('s_branch L_loop%d' % T)])]
        jobs.append([(nm, parts, 1)])
        loops = []
        jobs.append(loops)
        for w in range(NW()):
            nm = 'loop%dw%d' % (T, w)
            cnt = [I('s_add_u32 s%d, s%d, 1' % (sTrip, sTrip)), I('s_cmp_lt_u32 s%d, 6' % sTrip)]
            head = []
            if w == 0:
                head = [I('L_loop%d:' % T)]
                if NW() == 2:
                    head += [I('s_bitcmp1_b32 s%d, %d' % (sW, opt.wbit)), I('s_cbranch_scc1 L_loop%dw1' % T)]
                for k in range(1, NW() if NW() > 2 else 0):
                    head += [I('s_cmp_eq_u32 s%d, %d' % (sW, k)), I('s_cbranch_scc1 L_loop%dw%d' % (T, k))]
            sh = w * (opt.wshift if not opt.anneal else opt.skew)
            parts = [('r', head + [I('.p2align %d' % opt.loop_align), I('L_%s:' % nm)]),
                     ('s', iteration(2, T, T, T, nm + 'a', park=lambda ch, t, g: park_loop(0, 2, ch, t, g), shift=sh)),
                     ('s', iteration(3, T, T, T, nm + 'b', park=lambda ch, t, g: park_loop(1, 3, ch, t, g), shift=sh, tail=cnt)),
                     ('r', [I('s_nop 15') for _ in range(opt.padnop)] + [I('s_cbranch_scc1 L_%s' % nm)])]
            ex = (prof_mark(1 if T == 4 else 5) + rt_mark() if opt.prof else []) + [I('s_cmp_ge_u32 s%d, 8' % sPn), I('s_cbranch_scc1 L_end%d' % T)]
            ex += [I('s_cmp_eq_u32 s%d, 0' % sT4), I('s_cbranch_scc1 L_tr%d3' % T), I('s_branch L_tr%d4' % T)]
            parts.append(('r', ex))
            loops.append((nm, parts, opt.tries, sh))
        nm = 'end%d' % T
        parts = [('r', [I('L_%s:' % nm)])] + ending(T, nm) + [('r', [I('s_branch L_fin')])]
        jobs.append([(nm, parts, 1)])
    for T, Tn in ((4, 3), (3, 4), (3, 3), (4, 4)):
        nm = 'tr%d%d' % (T, Tn)
        parts = [('r', [I('L_%s:' % nm)])] + transition(T, Tn, nm) + [
                 ('r', (rt_mark(28) if opt.prof else []) + [I('s_branch L_loop%d' % Tn)])]
        jobs.append([(nm, parts, opt.tries_tr)])

    def run(job):
        ext = {}
        res = []
        for j in job:
            if len(j) == 4:
                res.append(Blk(j[0], chain_blocks(j[1], j[2], j[0], ext, j[3], 4 // NW())))
            else:
                res.append(Blk(j[0], chain_blocks(j[1], j[2], j[0])))
        return res
    with ThreadPoolExecutor(8) as ex:
        for res in ex.map(run, sorted(jobs, key=lambda j: -sum(len(p[1]) for x in j for p in x[1]))):
            for b in res:
                blocks[b.name] = b

    for nm, blk in blocks.items():
        pend = [] if nm.startswith('start') else canon_pending()
        blk.seq, _ = insert_lgkm_waits(blk.seq, pending=pend)
    l4 = ['loop4w%d' % w for w in range(NW())]
    l3 = ['loop3w%d' % w for w in range(NW())]
    preds = {'start4': [], 'start3': [], 'end4': l4, 'end3': l3, 'tr43': l4, 'tr34': l3, 'tr33': l3, 'tr44': l4}
    for x in l4:
        preds[x] = ['start4', x, 'tr34', 'tr44']
    for x in l3:
        preds[x] = ['start3', x, 'tr43', 'tr33']
    for nm, blk in blocks.items():
        for p in preds[nm] or [None]:
            hist = blocks[p].seq[-30:] if p else pro[-30:]
            blk.seq = fix_hazards(blk.seq, history=[x for x in hist])
    problems = []
    for nm, blk in blocks.items():
        for p in preds[nm]:
            cat = blocks[p].seq + blk.seq
            problems += check_hazards(cat, p + '+' + nm)
            problems += verify_lgkm(cat, p + '+' + nm)
    if problems:
        for p in problems[:40]:
            print('PROBLEM', p, file=sys.stderr)
        raise SystemExit('hazards found')
    if opt.fine:
        blk = blocks[opt.fine]
        seq = blk.seq
        lo, hi = max(opt.fine_lo, 1), min(opt.fine_hi, len(seq) - 1)
        pos = [lo + (hi - lo) * k // (len(FINE) - 1) for k in range(len(FINE))]
        out = []
        for i, c in enumerate(seq + [None]):
            for k, p in enumerate(pos):
                if p == i:
                    out.append(I('s_memtime s[%d:%d]' % (FINE[k], FINE[k] + 1)))
                    print('fine stamp %d at instr %d (est %d): %s' % (k, i, estimate(seq[:i]), c.text if c else 'END'), file=sys.stderr)
            if c is not None:
                out.append(c)
        blk.seq = out
    resolve_vm(blocks)
    L = []
    L.append(text_of(fix_hazards(pro)))
    order = ['start4', 'start3'] + l4 + ['tr43', 'tr44'] + l3 + ['tr34', 'tr33', 'end4', 'end3']
    for nm in order:
        L.append(text_of(blocks[nm].seq))
        if opt.verbose:
            s = blocks[nm].seq
            print('%-7s %5d instrs, %4d mfma, est %6d cycles' % (nm, len(s), sum(1 for x in s if x.kind == 'mfma'), estimate(s)), file=sys.stderr)
    fin = [I('L_fin:'), I('s_waitcnt vmcnt(0)')]
    if opt.stamps:
        fin += stamp_code()
    fin += [I('L_end:'), I('s_endpgm')]
    L.append(text_of(fin))
    if not opt.nocheck:
        for T in (4, 3):
            for b in (0, 1):
                L.append(text_of(rare_code(T, b)))
    for name, T, b in TRAMP:
        L.append(text_of([I('L_rs_%s:' % name), I('s_call_b64 s[%d:%d], L_rare%d_%d' % (sRet, sRet + 1, T, b)),
                          I('s_branch L_ret_%s' % name)]))
    global BLOCKS
    BLOCKS = blocks
    return '\n'.join(L)


def stamp_code():
    o = []
    A = lambda t: o.append(I(t))
    A('s_memrealtime s[76:77]')
    A('s_memtime s[78:79]')
    A('s_waitcnt lgkmcnt(0)')
    A('s_mov_b32 s80, s70')
    A('s_and_b32 s81, s71, 0xffff')
    A('s_mov_b32 s82, 0x100000')
    A('s_mov_b32 s83, 0x20000')
    if opt.fine:
        A('s_lshl_b32 s69, s2, 8')
        A('s_lshl_b32 s68, s%d, 6' % sW)
        A('s_add_u32 s69, s69, s68')
        A('s_add_u32 s69, s69, 0x30000')
        A('v_mov_b32 v40, s69')
        for k, r in enumerate(FINE):
            A('v_mov_b32 v42, s%d' % r)
            A('buffer_store_dword v42, v40, s[80:83], 0 offen offset:%d' % (4 * k))
            A('s_nop 1')
    A('s_cmp_eq_u32 s%d, 0' % sW)
    A('s_cbranch_scc0 L_end')
    A('s_lshl_b32 s69, s2, 6')
    A('v_mov_b32 v40, s69')
    for j, sr in enumerate((74, 72, 74, 72, 78, 76)):
        A('v_mov_b32 v42, s%d' % sr)
        A('v_mov_b32 v43, s%d' % (sr + 1))
        A('buffer_store_dwordx2 v[42:43], v40, s[80:83], 0 offen offset:%d' % (8 * j))
        A('s_nop 1')
    if opt.prof:
        A('s_lshl_b32 s84, s2, 5')
        A('s_add_u32 s84, s84, 0x10000')
        A('v_mov_b32 v40, s84')
        for k in range(6):
            A('v_mov_b32 v42, s%d' % (50 + k))
            A('buffer_store_dword v42, v40, s[80:83], 0 offen offset:%d' % (4 * k))
            A('s_nop 1')
    A('s_waitcnt vmcnt(0)')
    return o


def resolve_vm(blocks):
    waits = {}
    progs = set()
    for wd in role_words():
        for member in range(4):
            for w in range(4):
                ts = []
                for n in range(8):
                    role = (member ^ (wd >> (2 * n))) & 3
                    ts.append(4 if role == 0 or (role == 1 and w == 0) else 3)
                progs.add((tuple(ts), ((w >> opt.wbit) & 1) if NW() == 2 else w % NW()))
    for Ts, wv in sorted(progs):
        trace = [('start%d' % Ts[0], 0)]
        for p in range(8):
            for k in range(6):
                trace.append(('loop%dw%d' % (Ts[p], wv), 16 * p + 2 * k))
            trace.append(('tr%d%d' % (Ts[p], Ts[p + 1]) if p < 7 else 'end%d' % Ts[p], 16 * p))
        q = []
        waited = set()
        pub = set()
        freed = set()
        for nm, base in trace:
            def res(i):
                if i[0] in ('K', 'V', 'Q') or (i[0] == 'st' and i[1] != 'end'):
                    return (i[0], base + i[1])
                return tuple(i)
            for c in blocks[nm].seq:
                if c.note is not None and not opt.relax:
                    if c.note[0] == 'bar':
                        for x in c.note[1]:
                            if res(x) not in waited:
                                raise SystemExit('%s published before its wait in %s' % (res(x), nm))
                            pub.add(res(x))
                        freed.update(res(x) for x in c.note[2])
                    elif c.note[0] == 'rd':
                        x = res(c.note[1:])
                        if x not in pub or x in freed:
                            raise SystemExit('read of %s outside its window in %s: %s' % (x, nm, c.text))
                if c.vm_id is not None and c.vm_id[0] in ('K', 'V'):
                    x = res(c.vm_id)
                    if x[1] >= 2 and (x[0], x[1] - 2) not in freed:
                        raise SystemExit('load of %s before its slot is free in %s' % (x, nm))
                if c.vm_id is not None and c.vm_id[0] == 'prof':
                    pass
                elif c.vm_id is not None:
                    if res(c.vm_id) in waited:
                        raise SystemExit('vm id %s issued after a wait that covers it (%s in %s)' % (res(c.vm_id), c.text, nm))
                    q.append(res(c.vm_id))
                elif c.kind in ('dma', 'vld', 'vst'):
                    raise SystemExit('untagged memory instruction ' + c.text)
                if c.kind == 'wait' and isinstance(c.tag, dict) and 'need' in c.tag:
                    need = [res(i) for i in c.tag['need']]
                    waited.update(need)
                    idx = -1
                    for n_ in need:
                        where = [j for j, x in enumerate(q) if x == n_]
                        if not where:
                            if opt.nodma or opt.noq:
                                continue
                            raise SystemExit('vm id %s never issued (%s in %s)' % (n_, c.text, nm))
                        if n_[0] in ('K', 'V') and len(where) != 3:
                            raise SystemExit('vm id %s issued %d times' % (n_, len(where)))
                        idx = max(idx, where[-1])
                    cnt = len(q) - idx - 1
                    waits.setdefault(id(c), [c, 63])
                    waits[id(c)][1] = min(waits[id(c)][1], cnt)
    for c, n in waits.values():
        c.text = 's_waitcnt vmcnt(%d)' % n + (' lgkmcnt(%d)' % c.lgkm if c.lgkm is not None else '')


def late_addr():
    o = []
    A = lambda t: o.append(I(t))
    t0, t1, t2, t3, t4 = TMP, TMP + 1, TMP + 2, TMP + 3, TMP + 4
    A('v_and_b32 v%d, 15, v0' % t0)
    A('v_lshrrev_b32 v%d, 4, v0' % t1)
    A('v_lshrrev_b32 v%d, 3, v%d' % (t2, t0))
    A('v_and_b32 v%d, 7, v%d' % (t3, t0))
    A('v_lshlrev_b32 v%d, 7, v%d' % (vKA[0], t3))
    A('v_bfe_u32 v%d, v%d, 1, 2' % (t3, t0))
    A('v_lshlrev_b32 v%d, 1, v%d' % (t3, t3))
    A('v_mul_u32_u24 v%d, 5, v%d' % (t4, t2))
    A('v_xor_b32 v%d, v%d, v%d' % (t3, t3, t4))
    A('v_xor_b32 v%d, v%d, v%d' % (t3, t3, t1))
    A('v_lshl_add_u32 v%d, v%d, 4, v%d' % (vKA[0], t3, vKA[0]))
    A('v_lshl_add_u32 v%d, v%d, 10, v%d' % (vQA[0], t2, vKA[0]))
    A('v_add_u32 v%d, s%d, v%d' % (vQA[0], sParkW, vQA[0]))
    A('v_mul_u32_u24 v%d, 3072, v%d' % (t4, t2))
    A('v_add_u32 v%d, v%d, v%d' % (vKA[0], t4, vKA[0]))
    A('v_xor_b32 v%d, 64, v%d' % (vKA[1], vKA[0]))
    A('v_xor_b32 v%d, 64, v%d' % (vQA[1], vQA[0]))
    A('v_lshrrev_b32 v%d, 1, v%d' % (t2, t1))
    A('v_mul_u32_u24 v%d, 3072, v%d' % (vVA[0], t2))
    A('v_and_b32 v%d, 1, v%d' % (t3, t1))
    A('v_bfe_u32 v%d, v0, 2, 2' % t4)
    A('v_lshl_add_u32 v%d, v%d, 2, v%d' % (t0, t3, t4))
    A('v_lshl_add_u32 v%d, v%d, 7, v%d' % (vVA[0], t0, vVA[0]))
    A('v_lshrrev_b32 v%d, 1, v%d' % (t0, t0))
    A('v_lshlrev_b32 v%d, 1, v%d' % (t0, t0))
    A('v_mul_u32_u24 v%d, 5, v%d' % (t2, t2))
    A('v_xor_b32 v%d, v%d, v%d' % (t0, t0, t2))
    A('v_bfe_u32 v%d, v0, 1, 1' % t3)
    A('v_xor_b32 v%d, v%d, v%d' % (t0, t0, t3))
    A('v_lshl_add_u32 v%d, v%d, 4, v%d' % (vVA[0], t0, vVA[0]))
    A('v_and_b32 v%d, 1, v0' % t3)
    A('v_lshl_add_u32 v%d, v%d, 3, v%d' % (vVA[0], t3, vVA[0]))
    A('v_add_u32 v%d, %d, v%d' % (vVA[0], VBASE, vVA[0]))
    for m in range(1, 4):
        A('v_xor_b32 v%d, %d, v%d' % (vVA[m], 32 * m, vVA[0]))
    A('v_lshrrev_b32 v%d, 3, v0' % t0)
    A('v_and_b32 v%d, 15, v0' % t1)
    A('v_lshrrev_b32 v%d, 4, v0' % t2)
    A('v_lshrrev_b32 v%d, 1, v%d' % (t3, t2))
    A('v_and_b32 v%d, 7, v%d' % (t4, t1))
    A('v_xor_b32 v%d, v%d, v%d' % (t3, t3, t4))
    A('v_lshlrev_b32 v%d, 7, v%d' % (vOW, t1))
    A('v_lshl_add_u32 v%d, v%d, 4, v%d' % (vOW, t3, vOW))
    A('v_and_b32 v%d, 1, v%d' % (t2, t2))
    A('v_lshl_add_u32 v%d, v%d, 3, v%d' % (vOW, t2, vOW))
    A('v_add_u32 v%d, s%d, v%d' % (vOW, sParkW, vOW))
    A('v_and_b32 v%d, 7, v0' % t1)
    A('v_xor_b32 v%d, v%d, v%d' % (t2, t1, t0))
    A('v_lshlrev_b32 v%d, 7, v%d' % (vOR, t0))
    A('v_lshl_add_u32 v%d, v%d, 4, v%d' % (vOR, t2, vOR))
    A('v_add_u32 v%d, s%d, v%d' % (vOR, sParkW, vOR))
    A('v_add_u32 v%d, 2048, v%d' % (vOR, vOR))
    A('v_mul_u32_u24 v%d, 384, v%d' % (vOG, t0))
    A('v_lshl_add_u32 v%d, v%d, 4, v%d' % (vOG, t1, vOG))
    A('v_and_b32 v%d, 15, v0' % t0)
    A('v_and_b32 v%d, 3, v0' % t1)
    A('v_mov_b32 v%d, 0x3f803f80' % t3)
    A('v_cmp_eq_u32 s[%d:%d], 12, v%d' % (sT0, sT0 + 1, t0))
    for u in range(4):
        A('v_cmp_eq_u32 vcc, %d, v%d' % (u, t1))
        A('s_or_b64 vcc, vcc, s[%d:%d]' % (sT0, sT0 + 1))
        A('v_cndmask_b32 v%d, 0, v%d, vcc' % (t2, t3))
        for i in range(4):
            A('v_accvgpr_write_b32 a%d, v%d' % (SEL + 4 * u + i, t2))
    return o


def prologue(A, pro):
    A('s_cmp_ge_u32 s2, 256')
    A('s_cbranch_scc1 L_end')
    A('s_load_dwordx4 s[84:87], s[0:1], 0')
    A('s_load_dwordx4 s[88:91], s[0:1], 16')
    if opt.stamps:
        A('s_load_dwordx2 s[70:71], s[0:1], 40')
        A('s_memrealtime s[72:73]')
        A('s_memtime s[74:75]')
    if opt.prof:
        for k in range(6):
            A('s_mov_b32 s%d, 0' % (50 + k))
        A('s_memtime s[92:93]')
        A('s_waitcnt lgkmcnt(0)')
        A('s_mov_b32 s94, s92')
        A('s_mov_b32 s80, s70')
        A('s_and_b32 s81, s71, 0xffff')
        A('s_mov_b32 s82, 0x100000')
        A('s_mov_b32 s83, 0x20000')
        A('s_lshl_b32 s98, s2, 8')
        A('s_add_u32 s98, s98, 0x20000')
        A('v_lshrrev_b32 v30, 6, v0')
        A('s_nop 1')
        A('v_readfirstlane_b32 s99, v30')
        A('s_nop 4')
        A('s_lshl_b32 s99, s99, 6')
        A('s_add_u32 s98, s98, s99')
    A('v_lshrrev_b32 v%d, 6, v0' % vX)
    A('v_and_b32 v0, 63, v0')
    A('v_readfirstlane_b32 s%d, v%d' % (sW, vX))
    t0, t1, t2 = TMP, TMP + 1, TMP + 2
    A('v_lshrrev_b32 v%d, 3, v0' % t0)
    A('v_mul_u32_u24 v%d, 384, v%d' % (vPQ[0], t0))
    A('v_lshrrev_b32 v%d, 1, v%d' % (t1, t0))
    A('v_lshlrev_b32 v%d, 1, v%d' % (t1, t1))
    A('v_and_b32 v%d, 7, v0' % t2)
    A('v_xor_b32 v%d, v%d, v%d' % (t1, t1, t2))
    A('v_lshl_add_u32 v%d, v%d, 4, v%d' % (vPQ[0], t1, vPQ[0]))
    A('s_and_b32 s%d, s%d, 1' % (sT0, sW))
    A('s_mul_i32 s%d, s%d, 80' % (sT0, sT0))
    A('v_xor_b32 v%d, s%d, v%d' % (vPK, sT0, vPQ[0]))
    A('v_xor_b32 v%d, 80, v%d' % (vPQ[1], vPQ[0]))
    A('v_add_u32 v%d, 3072, v%d' % (vPQ[1], vPQ[1]))
    A('s_mov_b32 s%d, 0x3dd53b95' % sC)
    A('s_mov_b32 s%d, 0x%x' % (sThr, opt.thr))
    A('s_mov_b32 s%d, %d' % (sBig, 6144 - 128))
    A('s_mov_b32 s%d, 4096' % sBig2)
    A('s_mov_b32 s%d, 0' % sG3)
    A('s_mov_b32 s%d, 0xffff0000' % (sG3 + 1))
    A('s_and_b32 s%d, s2, 7' % sT0)
    A('s_lshr_b32 s%d, s2, 3' % sT1)
    A('s_and_b32 s%d, s%d, 3' % (sMember, sT1))
    A('s_lshr_b32 s%d, s%d, 2' % (sT1, sT1))
    A('s_lshl_b32 s%d, s%d, 3' % (sT0, sT0))
    A('s_add_u32 s%d, s%d, s%d' % (sT0, sT0, sT1))
    A('s_lshl_b32 s%d, s%d, 3' % (sT2, sT0))
    A('s_mul_i32 s%d, s%d, %d' % (sT3, sT2, KHEAD))
    A('s_mul_i32 s%d, s%d, %d' % (sHeadQ, sT2, QHEAD))
    A('s_mul_i32 s%d, s%d, 3072' % (sWK, sW))
    A('s_mul_i32 s%d, s%d, %d' % (sParkW, sW, PARKW))
    A('s_add_u32 s%d, s%d, %d' % (sParkW, sParkW, PARK))
    A('s_add_u32 s%d, s%d, s%d' % (sOffK, sT3, sWK))
    if opt.rot:
        A('s_mov_b32 s%d, %d' % (sKH, KHEAD))
        A('s_mul_i32 s%d, s%d, %d' % (sRot, sMember, opt.rot * TILE))
        for k in 'KV':
            A('s_mov_b32 s%d, s%d' % (sBase[k], sOffK))
            A('s_mov_b32 s%d, s%d' % (sPos[k], sRot))
        A('s_add_u32 s%d, s%d, s%d' % (sOffK, sOffK, sRot))
    A('s_mov_b32 s%d, s%d' % (sOffV, sOffK))
    A('s_add_u32 s%d, s%d, %d' % (SRD_K + 2, sT3, 8 * KHEAD))
    A('s_mov_b32 s%d, s%d' % (SRD_V + 2, SRD_K + 2))
    A('s_mov_b32 s%d, %d' % (SRD_Q + 2, QBYTES))
    A('s_mov_b32 s%d, 0' % (SRD_O + 2))
    A('s_mov_b32 s%d, 128' % sUO)
    A('s_mov_b32 s%d, 0' % sPn)
    rw = role_words()
    for j in range(4):
        A('s_mov_b32 s%d, 0x%x' % (60 + j, rw[2 * j] | (rw[2 * j + 1] << 16)))
    A('s_lshr_b32 s%d, s%d, 1' % (sT0, sT1))
    A('s_cmp_eq_u32 s%d, 1' % sT0)
    A('s_cselect_b32 s60, s61, s60')
    A('s_cmp_eq_u32 s%d, 2' % sT0)
    A('s_cselect_b32 s60, s62, s60')
    A('s_cmp_eq_u32 s%d, 3' % sT0)
    A('s_cselect_b32 s60, s63, s60')
    A('s_and_b32 s%d, s%d, 1' % (sT0, sT1))
    A('s_lshl_b32 s%d, s%d, 4' % (sT0, sT0))
    A('s_lshr_b32 s%d, s60, s%d' % (sPat, sT0))
    pro += qoff_calc(sOc)
    A('s_waitcnt lgkmcnt(0)')
    for srd, p in ((SRD_Q, 84), (SRD_K, 86), (SRD_V, 88), (SRD_O, 90)):
        A('s_mov_b32 s%d, s%d' % (srd, p))
        A('s_and_b32 s%d, s%d, 0xffff' % (srd + 1, p + 1))
        A('s_mov_b32 s%d, 0x20000' % (srd + 3))


HEADER = """; Kernarg layout (48 bytes): q, k, v, out, debug, ws
; Attention forward, B16 H32 Sq848 Sk512 D192 bf16.  Generated by gen/gen6.py (hand-written generator).
; @launch grid=(256,1,1) block=(256,1,1) lds=%d
.amdgcn_target "amdgcn-amd-amdhsa--gfx950"
.text
.globl %s
.p2align 8
.type %s,@function
%s:
"""
FOOTER = """
.section .rodata,"a"
.p2align 6
.amdhsa_kernel %s
  .amdhsa_next_free_vgpr 512
  .amdhsa_next_free_sgpr 102
  .amdhsa_accum_offset 256
  .amdhsa_group_segment_fixed_size 0
  .amdhsa_kernarg_size 48
  .amdhsa_user_sgpr_count 2
  .amdhsa_user_sgpr_kernarg_segment_ptr 1
  .amdhsa_system_sgpr_workgroup_id_x 1
.end_amdhsa_kernel
"""


def main():
    ap = argparse.ArgumentParser()
    ap.add_argument('-o', default='standalone__gqa_softmax__near_ridge.s')
    ap.add_argument('--set', action='append', default=[])
    a = ap.parse_args()
    for kv in a.set:
        k, v = kv.split('=', 1)
        cur = getattr(opt, k)
        if isinstance(cur, bool):
            v = v not in ('0', 'False', '')
        elif isinstance(cur, int):
            v = int(v, 0)
        elif isinstance(cur, float):
            v = float(v)
        setattr(opt, k, v)
    asmlib.LDS_LAT = opt.lds_lat
    asmlib.LDSW = opt.ldsw
    asmlib.STGAP = opt.stgap
    asmlib.WAIT_LAT = opt.wait_lat
    body = build()
    txt = HEADER % (LDS_BYTES, NAME, NAME, NAME) + body + FOOTER % NAME
    open(a.o, 'w').write(txt)
    print('wrote %s (%d bytes)' % (a.o, len(txt)), file=sys.stderr)


if __name__ == '__main__':
    main()
```

```python
import argparse
import sys

import asmlib
from asmlib import (Inst, schedule, insert_lgkm_waits, fix_hazards, check_hazards, verify_lgkm, estimate, text_of)

NAME = 'standalone__gqa_softmax__near_ridge_kernel'
SQ, SK, D = 848, 512, 192
QHEAD = SQ * D * 2
KHEAD = SK * D * 2
TILE = 32 * D * 2
SLOT = 2 * TILE
NSLOT = 6
RING = NSLOT * SLOT
OSTAGE = RING
LDS_BYTES = RING + 16384
BIAS = 2048
QBYTES = 512 * QHEAD
QOOB = QBYTES + BIAS
NPASS = 6

sW = 3
SRD_K, SRD_V, SRD_Q, SRD_O, SRD_A, SRD_B = 4, 8, 12, 16, 20, 24
sOffA, sOffB, sStride, sWA, sWB, sWr = 28, 29, 30, 31, 32, 33
sPair = 34
sW6 = 35
sC, sThr, sTrip, sPat, sT5 = 36, 37, 38, 39, 40
sQn, sOc = 41, 42
sAdj = 43
sRet = 44
sKs, sVs = 46, 47
sHeadQ = 48
sMember = 49
sD = [56, 57, 58, 59]
sSolo = 60
sKrel = 61
sT0, sT1, sT2, sT3 = 62, 63, 64, 65
sQa, sQb = 67, 68
sPn = 69
sOu = [84, 85, 86, 87, 66]

vLANE = 0
vKA = [1, 2]
vVA = [3, 4, 5, 6]
vOFF = [7, 8, 9]
vB = [10, 11, 12]
vNM = [13, 14, 15, 16, 17]
vL = [[18, 19, 20, 21, 22], [23, 24, 25, 26, 27]]
vONES = 28
SREG = 32
PREG = 72
TS = 102
vX = [110, 111]
KF = 112
VF = 128
QV = 144
TMP = 152
OV = 160
QA0 = 144


def S(u, kt):
    return SREG + (u * 2 + kt) * 4


def P6(u):
    return PREG + 6 * u


def Pop(u, b):
    return P6(u) + 2 * b


def Pdst(u, kt, h, b):
    return P6(u) + (2 + h if kt else 4 * b + h)


def Qr(u, ks):
    i = u * 6 + ks
    if i < 28:
        return 'a[%d:%d]' % (QA0 + 4 * i, QA0 + 4 * i + 3)
    return 'v[%d:%d]' % (QV + 4 * (i - 28), QV + 4 * (i - 28) + 3)


def O(u, t):
    if u < 2:
        return 'v', OV + (u * 12 + t) * 4
    return 'a', ((u - 2) * 12 + t) * 4


def Oq(u, t):
    f, i = O(u, t)
    return '%s[%d:%d]' % (f, i, i + 3)


def vr(x, n=4):
    return 'v[%d:%d]' % (x, x + n - 1)


class Opt:
    pol_kv = ''
    pol_q = 'nt'
    pol_o = 'nt'
    thr = 0x47800000
    stamps = False
    prof = False
    rt_cycles = True
    fine = ''
    fine_lo = 0
    fine_hi = 100000
    verbose = False
    vlead = 4
    bar_lead = 12
    wshift = 5
    hoist5 = 1
    hoist4 = 3
    dma_span = 0.8
    lds_lat = 140
    wait_lat = 140
    ldsw = 12
    stgap = 60
    pk_from = 6
    b_pace = 24.0
    b_pace2 = 24.0
    e2_t0 = 500
    e2_t1 = 1500
    q2wait_t = 300
    patterns = 'mix'
    nobar = False
    nodma = False
    nostore = False
    nocheck = False
    wvar = 2
    urgent = False
    vm_inorder = True
    epi_prio = -45000
    b_order = 'A'
    e18_in_b = False
    e16_in_a = True
    tripprof = 0
    noq = False


opt = Opt()


def I(text, **kw):
    return Inst(text, **kw)


def hoist(T):
    return opt.hoist5 if T == 5 else opt.hoist4


class KRing:
    def __init__(self):
        self.n = 0

    def read(self, kt, ks, odd, key, areg=None, extra=0):
        r = KF + 4 * (self.n % 4)
        self.n += 1
        a = areg or vKA
        off = kt * 6144 + (ks // 2) * 1024 + odd * SLOT + extra
        return r, I('ds_read_b128 %s, v%d offset:%d' % (vr(r), a[ks % 2], off), tag=key)


def qk_stream(T, odd, order):
    ring = KRing()
    out = []
    mf = []
    reads = []
    if order == 'A':
        for kt in range(2):
            for ks in range(6):
                r, rd = ring.read(kt, ks, odd, ('kf', kt, ks))
                out.append(rd)
                reads.append(rd)
                for u in range(T):
                    d = vr(S(u, kt))
                    m = I('v_mfma_f32_16x16x32_bf16 %s, %s, %s, %s' % (d, vr(r), Qr(u, ks), d if ks else '0'), tag=('qk', kt, ks, u))
                    out.append(m)
                    mf.append(m)
    elif order == 'G':
        for grp in (range(0, 3), range(3, T)):
            for kt in range(2):
                for ks in range(6):
                    r, rd = ring.read(kt, ks, odd, ('kf', kt, ks, grp[0]))
                    out.append(rd)
                    reads.append(rd)
                    for u in grp:
                        d = vr(S(u, kt))
                        m = I('v_mfma_f32_16x16x32_bf16 %s, %s, %s, %s' % (d, vr(r), Qr(u, ks), d if ks else '0'), tag=('qk', kt, ks, u))
                        out.append(m)
                        mf.append(m)
    else:
        for u in range(T):
            for kt in range(2):
                for ks in range(6):
                    r, rd = ring.read(kt, ks, odd, ('kf', kt, ks, u))
                    out.append(rd)
                    reads.append(rd)
                    d = vr(S(u, kt))
                    m = I('v_mfma_f32_16x16x32_bf16 %s, %s, %s, %s' % (d, vr(r), Qr(u, ks), d if ks else '0'), tag=('qk', kt, ks, u))
                    out.append(m)
                    mf.append(m)
    return out, mf, reads


def v_reads(t, odd, b):
    r = VF + 4 * (t % 4)
    off = (t // 4) * 1024 + odd * SLOT
    lo, hi = (off, off + 6144) if b == 0 else (off + 6144, off)
    return [I('ds_read_b64_tr_b16 %s, v%d offset:%d' % (vr(r, 2), vVA[t % 4], lo), tag=('vf', t)),
            I('ds_read_b64_tr_b16 %s, v%d offset:%d' % (vr(r + 2, 2), vVA[t % 4], hi), tag=('vf', t))]


def pv_stream(T, b, odd, first):
    out = []
    mf = []
    reads = []
    for t in range(12):
        if t >= opt.vlead:
            rd = v_reads(t, odd, b)
            out += rd
            reads += rd
        for u in range(T):
            d = Oq(u, t)
            m = I('v_mfma_f32_16x16x32_bf16 %s, %s, %s, %s' % (d, vr(VF + 4 * (t % 4)), vr(Pop(u, b)), '0' if first else d), tag=('pv', t, u))
            out.append(m)
            mf.append(m)
    return out, mf, reads


def sm_pairs(T):
    return [(u, 0, h) for u in range(T) for h in range(2)] + [(u, 1, h) for u in range(T) for h in range(2)]


def sm_exp(u, kt, h):
    a = S(u, kt) + 2 * h
    return [I('v_fma_f32 v%d, v%d, s%d, v%d' % (a, a, sC, vNM[u])),
            I('v_fma_f32 v%d, v%d, s%d, v%d' % (a + 1, a + 1, sC, vNM[u])),
            I('v_exp_f32 v%d, v%d' % (a, a)),
            I('v_exp_f32 v%d, v%d' % (a + 1, a + 1))]


def sm_cvt(u, kt, h, b):
    a = S(u, kt) + 2 * h
    return I('v_cvt_pk_bf16_f32 v%d, v%d, v%d' % (Pdst(u, kt, h, b), a, a + 1))


def sm_head(T, b):
    out = []
    for (u, kt, h) in sm_pairs(T)[:hoist(T)]:
        out += sm_exp(u, kt, h) + [sm_cvt(u, kt, h, b)]
    return out


def sm_body(T, b, lo):
    pre = []
    post = []
    for (u, kt, h) in sm_pairs(T)[lo:]:
        pre += sm_exp(u, kt, h)
        if kt == 0:
            pre.append(sm_cvt(u, kt, h, b))
        else:
            post.append(sm_cvt(u, kt, h, b))
    return pre, post


def TSq(u):
    return TS + 4 * (u % 2)


def ts_mfma(u, b):
    m = I('v_mfma_f32_16x16x32_bf16 %s, %s, %s, 0' % (vr(TSq(u)), vr(vONES), vr(Pop(u, b))), tag=('ts', u))
    m.floating = True
    return m


def sums(T, b, first):
    out = []
    mf = []
    for u in range(T):
        m = ts_mfma(u, b)
        mf.append(m)
        out.append(m)
        if first:
            x = I('v_mov_b32 v%d, v%d' % (vL[b][u], TSq(u)))
        else:
            x = I('v_add_f32 v%d, v%d, v%d' % (vL[b][u], vL[1 - b][u], TSq(u)))
        x.prio = -100000
        out.append(x)
    return out, mf


def check_ops(T, b):
    if opt.nocheck:
        return []
    l = vL[b]
    out = [I('v_max3_f32 v%d, v%d, v%d, v%d' % (vX[0], l[0], l[1], l[2]))]
    if T == 5:
        out.append(I('v_max3_f32 v%d, v%d, v%d, v%d' % (vX[0], vX[0], l[3], l[4])))
    else:
        out.append(I('v_max_f32 v%d, v%d, v%d' % (vX[0], vX[0], l[3])))
    out.append(I('v_cmp_lt_f32 vcc, s%d, v%d' % (sThr, vX[0])))
    for x in out:
        x.prio = -100000
    return out


TRAMP = []


def site(T, b, name, krel):
    if opt.nocheck:
        return []
    TRAMP.append((name, T, b, krel))
    x = I('s_cbranch_vccnz L_rs_%s\nL_ret_%s:' % (name, name))
    x.writes.add(('scc', 0))
    x.prio = -100000
    return [x]


def max_init(T):
    out = []
    for u in range(T):
        s = [S(u, kt) + i for kt in range(2) for i in range(4)]
        r = TMP + (u % 2) * 2
        x = r + 1
        out += [I('v_max3_f32 v%d, v%d, v%d, v%d' % (r, s[0], s[1], s[2])),
                I('v_max3_f32 v%d, v%d, v%d, v%d' % (r, r, s[3], s[4])),
                I('v_max3_f32 v%d, v%d, v%d, v%d' % (r, r, s[5], s[6])),
                I('v_max_f32 v%d, v%d, v%d' % (r, r, s[7])),
                I('v_mov_b32 v%d, v%d' % (x, r)),
                I('v_permlane32_swap_b32 v%d, v%d' % (x, r)),
                I('v_max_f32 v%d, v%d, v%d' % (r, r, x)),
                I('v_mov_b32 v%d, v%d' % (x, r)),
                I('v_permlane16_swap_b32 v%d, v%d' % (x, r)),
                I('v_max_f32 v%d, v%d, v%d' % (r, r, x)),
                I('v_mul_f32_e64 v%d, -s%d, v%d' % (vNM[u], sC, r))]
    return out


def chain_seq(seq, chain):
    for x in seq:
        if chain[0] is not None:
            x.after.append(chain[0])
        chain[0] = x


def dma_entry(rel, chain, dyn):
    pol = (' ' + opt.pol_kv) if opt.pol_kv else ''
    out = [I('s_add_u32 m0, s%d, s%d' % (sWr, sWA))]
    dm = []
    for c in range(3):
        d = I('buffer_load_dwordx4 v%d, s[%d:%d], s%d offen offset:%d%s lds' % (vOFF[c], SRD_A, SRD_A + 3, sOffA, c * 1024, pol),
              vm_id=('pos', rel))
        out.append(d)
        dm.append(d)
    out.append(I('s_add_u32 m0, s%d, s%d' % (sWr, sWB)))
    for c in range(3):
        d = I('buffer_load_dwordx4 v%d, s[%d:%d], s%d offen offset:%d%s lds' % ((vB if dyn else vOFF)[c], SRD_B, SRD_B + 3, sOffB, c * 1024, pol),
              vm_id=('pos', rel))
        out.append(d)
        dm.append(d)
    out += [I('s_add_u32 s%d, s%d, s%d' % (sOffA, sOffA, sStride)),
            I('s_add_u32 s%d, s%d, s%d' % (sOffB, sOffB, sStride)),
            I('s_add_u32 s%d, s%d, %d' % (sWr, sWr, SLOT)),
            I('s_cmp_eq_u32 s%d, %d' % (sWr, RING)),
            I('s_cselect_b32 s%d, 0, s%d' % (sWr, sWr))]
    if opt.nodma:
        out = [x for x in out if x.kind != 'dma']
        dm = []
    chain_seq(out, chain)
    return out, dm


def dma_group(rels, chain, t0, t1, dyn=False):
    prog = []
    dmas = []
    for rel in rels:
        d, dm = dma_entry(rel, chain, dyn)
        prog += d
        dmas += dm
    nb = max(len(dmas), 1)
    for i, d in enumerate(dmas):
        d.notbefore = int(t0 + (t1 - t0) * i / nb)
        d.prio = -100000
    return prog, dmas


def q_tile_dma(u, slot_sreg, slot_imm, chain, tag):
    pol = (' ' + opt.pol_q) if opt.pol_q else ''
    out = [I('s_and_b32 s%d, s%d, 1' % (sT1, sW)),
           I('s_mul_i32 s%d, s%d, 3072' % (sT1, sT1)),
           I('s_add_u32 s%d, s%d, %d' % (sQa, sQn, u * 6144)),
           I('s_add_u32 s%d, s%d, s%d' % (sQb, sQa, sT1)),
           I('s_add_u32 s%d, s%d, s%d' % (sT2, slot_sreg, sW6)),
           I('s_add_u32 s%d, s%d, %d' % (sT2, sT2, slot_imm)),
           I('s_add_u32 m0, s%d, s%d' % (sT2, sT1))]
    dm = []
    for c in range(3):
        d = I('buffer_load_dwordx4 v%d, s[%d:%d], s%d offen offset:%d%s lds' % (vOFF[c], SRD_Q, SRD_Q + 3, sQb, c * 1024, pol), vm_id=tag)
        out.append(d)
        dm.append(d)
    out += [I('s_sub_u32 s%d, 3072, s%d' % (sT1, sT1)),
            I('s_add_u32 s%d, s%d, s%d' % (sQb, sQa, sT1)),
            I('s_add_u32 m0, s%d, s%d' % (sT2, sT1))]
    for c in range(3):
        d = I('buffer_load_dwordx4 v%d, s[%d:%d], s%d offen offset:%d%s lds' % (vB[c], SRD_Q, SRD_Q + 3, sQb, c * 1024, pol), vm_id=tag)
        out.append(d)
        dm.append(d)
    if opt.nodma:
        out = [x for x in out if x.kind != 'dma']
        dm = []
    chain_seq(out, chain)
    return out, dm


def q_read(u, ks, areg, imm):
    return I('ds_read_b128 %s, v%d offset:%d' % (Qr(u, ks), areg[ks % 2], imm + (ks // 2) * 1024), tag=('qf', u, ks))


def pair_step(d):
    return [I('s_add_u32 s%d, s%d, %d' % (sT0, sPair, 2 * SLOT)),
            I('s_cmp_eq_u32 s%d, %d' % (sT0, RING)),
            I('s_cselect_b32 s%d, 0, s%d' % (sT0, sT0)),
            I('s_sub_u32 s%d, s%d, s%d' % (d, sT0, sPair)),
            I('s_mov_b32 s%d, s%d' % (sPair, sT0))]


def addr_step(regs, d):
    return [I('v_add_u32 v%d, s%d, v%d' % (r, d, r)) for r in regs]


def vm_wait(need):
    w = I('s_waitcnt vmcnt(0)')
    w.tag = {'need': need}
    return w


def barrier(need, after, notbefore):
    b = I('s_barrier' if not opt.nobar else 's_nop 0')
    b.kind = 'barrier'
    b.prio = -100000
    if need is None:
        b.after += after
        b.notbefore = notbefore
        return [b], b
    w = vm_wait(need)
    w.after += after
    w.notbefore = notbefore
    w.prio = -100000
    b.after.append(w)
    return [w, b], b


def early_v(odd_next, b_next, bar, H, T):
    out = []
    for t in range(opt.vlead):
        for r in v_reads(t, odd_next, b_next):
            r.after.append(bar)
            r.prio = -(H + 400) + 16 * T * t
            r.notbefore = H - 16 * (opt.bar_lead - 2) + 16 * T * t // 2
            out.append(r)
    return out


def phase_iter(T, b, odd, first_pv, dma_pre, dma_post, need, next_odd, name, krel, kstep=None, vstep=None, pstep=None,
               tail=None, shift=0, dyn=False, restore_vb=False):
    nb = 1 - b
    chain = [None]
    prog = []
    H = 16 * 25 * T
    if pstep is not None:
        p = pair_step(pstep)
        chain_seq(p, chain)
        prog += p
    d, dmas = dma_group(dma_pre, chain, 48, H * opt.dma_span, dyn)
    prog += d
    pre, post = sm_body(T, b, hoist(T))
    prog += pre
    pv, pvm, _ = pv_stream(T, nb, odd, first_pv)
    prog += pv
    prog += post
    sm, tsm = sums(T, b, False)
    prog += sm
    qk, qkm, _ = qk_stream(T, odd, 'A')
    prog += qk
    prog += check_ops(T, b)
    br = site(T, b, name, krel)
    for x in br:
        x.after += pvm + tsm
    prog += br
    nxt = sm_head(T, nb)
    for x in nxt:
        x.after += br
    prog += nxt
    if tail:
        for x in tail:
            x.prio = -90000
        tail[0].after += [chain[0]] + br
        chain_seq(tail, [None])
        prog += tail
    steps = []
    if vstep is not None:
        steps += addr_step(vVA, vstep)
    if kstep is not None:
        steps += addr_step(vKA, kstep)
    for x in steps:
        x.after += br
    prog += steps
    bl, bar = barrier(need, list(dmas) + br, H - 16 * (opt.bar_lead + shift))
    prog += bl
    if dma_post:
        d, dm = dma_group(dma_post, chain, H - 16 * opt.bar_lead, H - 32, dyn)
        for x in dm:
            x.after.append(bar)
        prog += d
    if restore_vb:
        rv = [I('v_mov_b32 v%d, v%d' % (vB[c], vOFF[c])) for c in range(3)]
        prog += rv
    prog += early_v(next_odd, b, bar, H, T)
    return prog


vQA = [TMP + 6, TMP + 7]
vQB = [TMP + 4, TMP + 5]


def phase_A(T, Tn, last, name):
    chain = [None]
    prog = []
    H = 16 * 13 * T + 4 * 26 * T
    dmas = []
    p = [I('s_add_u32 s%d, s%d, %d' % (sT3, sPair, SLOT))] + pair_step(sD[0])
    if not last:
        p.append(I('s_add_u32 s%d, s%d, s%d' % (sOffB, sOffB, sAdj)))
    chain_seq(p, chain)
    prog += p
    if not last:
        prog += [I('v_xor_b32 v%d, 80, v%d' % (vB[c], vOFF[c])) for c in range(3)]
        w = vm_wait([('pos', 13), ('pos', 14)])
        w.prio = -100000
        prog.append(w)
        prog += qa_calc()
        q0 = [q_read(0, ks, vQA, SLOT) for ks in range(6)]
        q1 = [q_read(1, ks, vQB, 0) for ks in range(6)]
        for r in q0 + q1:
            r.after.append(w)
            r.prio = -50000
        prog += q0 + q1
        d, dm = q_tile_dma(2, sT3, 0, chain, ('q', 2))
        for x in dm:
            x.reads = x.reads | set().union(*[r.writes for r in q0])
            x.prio = -40000
        prog += d
        dmas += dm
        d, dm = q_tile_dma(3, sPair, 0, chain, ('q', 3))
        for x in dm:
            x.reads = x.reads | set().union(*[r.writes for r in q1])
            x.prio = -40000
        prog += d
        dmas += dm
        if Tn == 5:
            d, dm = q_tile_dma(4, sWr, 0, chain, ('q', 4))
            for x in dm:
                x.prio = -40000
            prog += d
            dmas += dm
    pre, post = sm_body(T, 1, hoist(T))
    prog += pre
    pv, pvm, _ = pv_stream(T, 0, 0, False)
    prog += pv
    prog += post
    sm, tsm = sums(T, 1, False)
    prog += sm
    prog += check_ops(T, 1)
    br = site(T, 1, name, 'prev' if last else 'prevA')
    for x in br:
        x.after += pvm + tsm
        if not last:
            x.after += q0 + q1 + dmas
            x.reads |= set(('v', r) for r in vQA + vQB)
            x.writes |= set(('v', r) for r in vQA + vQB)
    prog += br
    st = addr_step(vVA, sD[0])
    prog += st
    bl, bar = barrier([('pos', 15)], br + dmas, 16 * 13 * T)
    prog += bl
    prog += early_v(1, 1, bar, 16 * 13 * T + 200, T)
    return prog


def frag_voff(reg, tmp):
    return [I('v_and_b32 v%d, 15, v%d' % (reg, vLANE)),
            I('v_mul_u32_u24 v%d, 384, v%d' % (reg, reg)),
            I('v_lshrrev_b32 v%d, 4, v%d' % (tmp, vLANE)),
            I('v_lshl_add_u32 v%d, v%d, 4, v%d' % (reg, tmp, reg)),
            I('v_add_u32 v%d, %d, v%d' % (reg, BIAS, reg))]


def q4_direct(chain):
    pol = (' ' + opt.pol_q) if opt.pol_q else ''
    out = frag_voff(TMP, TMP + 1)
    so = I('s_add_u32 s%d, s%d, %d' % (sQa, sQn, 4 * 6144))
    ld = [I('buffer_load_dwordx4 %s, v%d, s[%d:%d], s%d offen offset:%d%s' % (Qr(4, ks), TMP, SRD_Q, SRD_Q + 3, sQa, ks * 64, pol),
            vm_id=('q', 4)) for ks in range(6)]
    chain_seq([so] + ld, chain)
    for x in ld:
        x.prio = -40000
    return out + [so] + ld, ld


def qa_calc():
    o = [I('v_add_u32 v%d, s%d, v%d' % (vQA[m], sW6, vKA[m])) for m in range(2)]
    o += [I('v_add_u32 v%d, s%d, v%d' % (vQB[m], sD[0], vQA[m])) for m in range(2)]
    return o


def q_global(soff, tiles):
    o = frag_voff(vX[0], vX[1])
    for u in tiles:
        o.append(I('s_add_u32 s%d, s%d, %d' % (sT1, soff, u * 6144)))
        for ks in range(6):
            o.append(I('buffer_load_dwordx4 %s, v%d, s[%d:%d], s%d offen offset:%d' % (Qr(u, ks), vX[0], SRD_Q, SRD_Q + 3, sT1, ks * 64)))
    o.append(I('s_waitcnt vmcnt(0)'))
    return o


def epi_addr():
    w = [TMP, TMP + 1, TMP + 2, TMP + 3]
    rd, gl = P6(4), P6(4) + 1
    a, c = vX[0], vX[1]
    o = [I('v_and_b32 v%d, 15, v%d' % (a, vLANE)),
         I('v_lshrrev_b32 v%d, 5, v%d' % (c, vLANE)),
         I('v_and_b32 v%d, 7, v%d' % (w[1], a)),
         I('v_xor_b32 v%d, v%d, v%d' % (c, c, w[1])),
         I('v_lshlrev_b32 v%d, 7, v%d' % (w[0], a)),
         I('v_lshl_add_u32 v%d, v%d, 4, v%d' % (w[0], c, w[0])),
         I('v_bfe_u32 v%d, v%d, 4, 1' % (c, vLANE)),
         I('v_lshl_add_u32 v%d, v%d, 3, v%d' % (w[0], c, w[0])),
         I('s_lshl_b32 s%d, s%d, 12' % (sT3, sW)),
         I('s_add_u32 s%d, s%d, %d' % (sT3, sT3, OSTAGE)),
         I('v_add_u32 v%d, s%d, v%d' % (w[0], sT3, w[0]))]
    o += [I('v_xor_b32 v%d, %d, v%d' % (w[i], 32 * i, w[0])) for i in range(1, 4)]
    o += [I('v_lshrrev_b32 v%d, 3, v%d' % (a, vLANE)),
          I('v_and_b32 v%d, 7, v%d' % (c, vLANE)),
          I('v_mul_u32_u24 v%d, 384, v%d' % (gl, a)),
          I('v_lshl_add_u32 v%d, v%d, 4, v%d' % (gl, c, gl)),
          I('v_xor_b32 v%d, v%d, v%d' % (c, c, a)),
          I('v_lshlrev_b32 v%d, 7, v%d' % (rd, a)),
          I('v_lshl_add_u32 v%d, v%d, 4, v%d' % (rd, c, rd)),
          I('v_add_u32 v%d, s%d, v%d' % (rd, sT3, rd))]
    return o, w, rd, gl


def epilogue(T):
    pol = (' ' + opt.pol_o) if opt.pol_o else ''
    out, wa, vOR, vOG = epi_addr()
    for x in out:
        x.prio = -150000
    inv = [vL[u % 2][u] for u in range(T)]
    assert all(r % 2 == 0 for r in inv)
    for u in range(T):
        out.append(I('v_rcp_f32 v%d, v%d' % (inv[u], vL[1][u])))
    order = [(c, u) for c in range(3) for u in range(2)] + [(c, u) for c in range(3) for u in range(2, T)]
    prev_ds = None
    stores = []
    for k, (c, u) in enumerate(order):
        buf = k % 2
        usepk = k >= opt.pk_from
        for tt in range(4):
            t = 4 * c + tt
            fl, o0 = O(u, t)
            pk = P6(tt)
            if fl == 'a':
                x = P6(tt) + 2
                for i in range(4):
                    out.append(I('v_accvgpr_read_b32 v%d, a%d' % (x + i, o0 + i)))
            else:
                x = o0
            if usepk:
                for i in (0, 2):
                    out.append(I('v_pk_mul_f32 v[%d:%d], v[%d:%d], v[%d:%d] op_sel_hi:[1,0]' %
                                 (x + i, x + i + 1, x + i, x + i + 1, inv[u], inv[u] + 1)))
            else:
                for i in range(4):
                    out.append(I('v_mul_f32 v%d, v%d, v%d' % (x + i, x + i, inv[u])))
            out.append(I('v_cvt_pk_bf16_f32 v%d, v%d, v%d' % (pk, x, x + 1)))
            out.append(I('v_cvt_pk_bf16_f32 v%d, v%d, v%d' % (pk + 1, x + 2, x + 3)))
            w = I('ds_write_b64 v%d, v[%d:%d] offset:%d' % (wa[tt], pk, pk + 1, buf * 2048))
            w.prio = opt.epi_prio
            if prev_ds is not None:
                w.after.append(prev_ds)
            prev_ds = w
            out.append(w)
        if k < 6 or buf == 0:
            rb = [TS, TS + 4]
        else:
            rb = [VF, VF + 4]
        for rho in range(2):
            r = I('ds_read_b128 %s, v%d offset:%d' % (vr(rb[rho]), vOR, buf * 2048 + rho * 1024))
            r.prio = opt.epi_prio
            r.after.append(prev_ds)
            prev_ds = r
            out.append(r)
        for rho in range(2):
            st = I('buffer_store_dwordx4 %s, v%d, s[%d:%d], s%d offen offset:%d%s' %
                   (vr(rb[rho]), vOG, SRD_O, SRD_O + 3, sOu[u], rho * 3072 + c * 128, pol), vm_id=('st',))
            if opt.nostore:
                st = I('s_nop 0')
                st.kind = 'salu'
                st.reads = set()
                st.writes = set()
            out.append(st)
            stores.append(st)
    return out, stores


def phase_B(T, Tn, last):
    chain = [None]
    prog = [I('s_add_u32 s%d, s%d, %d' % (sOu[u], sOc, u * 6144)) for u in range(T)]
    for x in prog:
        x.prio = -200000
    ep, stores = epilogue(T)
    head = [x for x in ep if x.prio <= -150000]
    ep = [x for x in ep if x.prio > -150000]
    prog += head
    pv, pvm, vre = pv_stream(T, 1, 1, False)
    for r in vre:
        r.prio = -60000
    for j, m in enumerate(pvm):
        m.notbefore = int(opt.b_pace * j)
    t0 = opt.b_pace * len(pvm)
    if not last:
        p = pair_step(sD[1])
        for x in p:
            x.prio = -160000
        chain_seq(p, chain)
        prog += p
        w2 = vm_wait([('q', 2), ('q', 3)] + ([('q', 4)] if Tn == 5 else []))
        w2.prio = -50000
        w2.notbefore = opt.q2wait_t
        prog.append(w2)
        if not opt.vm_inorder:
            for st in stores:
                st.after.append(w2)
        q2 = [q_read(2, ks, vQA, SLOT) for ks in range(6)] + [q_read(3, ks, vQB, 0) for ks in range(6)]
        if Tn == 5:
            qc = [I('v_add_u32 v%d, s%d, v%d' % (vX[m], sD[1], vQB[m])) for m in range(2)]
            for x in qc:
                x.prio = -140000
            prog += qc
            q2 += [q_read(4, ks, vX, 0) for ks in range(6)]
        for r in q2:
            r.after.append(w2)
            r.prio = -50000
        prog += q2
        bl, barq = barrier(None, [], 0)
        barq.reads = set().union(*[r.writes for r in q2])
        prog += bl
        d, dm = dma_group([16, 17], chain, opt.e2_t0, opt.e2_t1)
        for x in dm:
            x.after.append(barq)
        prog += d
    prog += pv
    prog += ep
    if not last:
        qk, qkm, kre = qk_stream(Tn, 0, opt.b_order)
        for j, m in enumerate(qkm):
            m.notbefore = int(t0 + opt.b_pace2 * j)
        for r in kre:
            r.prio = -50000
        prog += qk
        prog += addr_step(vVA, sD[1])
        prog += addr_step(vKA, sD[0])
        bl, bar = barrier(None, [qkm[-1]], 0)
        prog += bl
        if opt.e18_in_b:
            d, dm = dma_group([18, 19], chain, 0, 0)
            tb = int(t0 + opt.b_pace2 * len(qkm))
            for i, x in enumerate(dm):
                x.after.append(bar)
                x.notbefore = tb + 100 * i
            prog += d
        fin = [I('s_mov_b32 s%d, s%d' % (sOc, sQn))]
        fin[0].after += stores
        prog += fin
    return prog


def role_calc(dst):
    o = []
    A = lambda t: o.append(I(t))
    A('s_lshl_b32 s%d, s%d, 1' % (sT0, sPn))
    A('s_lshr_b32 s%d, s%d, s%d' % (sT0, sPat, sT0))
    A('s_and_b32 s%d, s%d, 3' % (sT0, sT0))
    A('s_add_u32 s%d, s%d, s%d' % (sT0, sT0, sMember))
    A('s_sub_u32 s%d, s%d, 3' % (sT1, sT0))
    A('s_cmp_ge_u32 s%d, 3' % sT0)
    A('s_cselect_b32 s%d, s%d, s%d' % (sT0, sT1, sT0))
    A('s_mul_i32 s%d, s%d, 5' % (sT2, sW))
    A('s_mov_b32 s%d, 1' % sT5)
    A('s_lshl_b32 s%d, s%d, 2' % (sT1, sW))
    A('s_add_u32 s%d, s%d, 21' % (sT3, sT1))
    A('s_cmp_eq_u32 s%d, 0' % sW)
    A('s_cselect_b32 s%d, 20, s%d' % (sT3, sT3))
    A('s_cselect_b32 s%d, 1, 0' % dst)
    A('s_cmp_eq_u32 s%d, 1' % sT0)
    A('s_cselect_b32 s%d, s%d, s%d' % (sT2, sT3, sT2))
    A('s_cselect_b32 s%d, s%d, s%d' % (sT5, dst, sT5))
    A('s_add_u32 s%d, s%d, 37' % (sT3, sT1))
    A('s_cmp_eq_u32 s%d, 2' % sT0)
    A('s_cselect_b32 s%d, s%d, s%d' % (sT2, sT3, sT2))
    A('s_cselect_b32 s%d, 0, s%d' % (sT5, sT5))
    A('s_mul_i32 s%d, s%d, 6144' % (sT2, sT2))
    A('s_add_u32 s%d, s%d, s%d' % (dst, sHeadQ, sT2))
    return o


def next_q_calc():
    o = []
    A = lambda t: o.append(I(t))
    A('s_add_u32 s%d, s%d, 1' % (sPn, sPn))
    A('s_cmp_eq_u32 s%d, 3' % sPn)
    A('s_cselect_b32 s%d, 0, s%d' % (sT0, sSolo))
    A('s_cmp_ge_u32 s%d, %d' % (sPn, NPASS))
    A('s_cselect_b32 s%d, 0, s%d' % (sT0, sT0))
    A('s_mul_i32 s%d, s%d, %d' % (sAdj, sT0, -KHEAD))
    A('s_xor_b32 s%d, s%d, 1' % (sT0, sT0))
    A('s_mul_i32 s%d, s%d, %d' % (sT0, sT0, QHEAD))
    A('s_add_u32 s%d, s%d, s%d' % (sHeadQ, sHeadQ, sT0))
    o += role_calc(sQn)
    A('s_cmp_ge_u32 s%d, %d' % (sPn, NPASS))
    A('s_cselect_b32 s%d, %d, s%d' % (sQn, QOOB, sQn))
    return o


def phase_C(T, dma_rels, need_k, need, odd_k, kstep, first):
    chain = [None]
    prog = []
    H = 16 * 13 * T + 4 * 50 * T
    o = next_q_calc()
    chain_seq(o, chain)
    prog += o
    pre_bar = []
    if need_k is not None:
        bl, bar0 = barrier(need_k, [], 0)
        prog += bl
        pre_bar = [bar0]
    d, dmas = dma_group(dma_rels, chain, 32, H * 0.5)
    prog += d
    prog += max_init(T)
    pre, post = sm_body(T, 0, 0)
    prog += pre + post
    sm, tsm = sums(T, 0, True)
    prog += sm
    qk, qkm, kre = qk_stream(T, odd_k, 'A')
    for r in kre:
        r.after += pre_bar
    prog += qk
    prog += sm_head(T, 1)
    prog += addr_step(vKA, kstep)
    bl, bar = barrier(need, list(dmas), H - 16 * opt.bar_lead)
    prog += bl
    prog += early_v(0, 0, bar, H, T)
    return prog


def mode_code(T, sfx):
    o = []
    A = lambda t: o.append(I(t))
    A('L_mode%d%s:' % (T, sfx))
    A('s_cmp_eq_u32 s%d, 5' % sTrip)
    A('s_cbranch_scc1 L_mode%d%s_kv' % (T, sfx))
    A('s_mov_b32 s%d, s%d' % (sKs, sOffA))
    A('s_mov_b32 s%d, s%d' % (sVs, sOffB))
    for i in range(4):
        A('s_mov_b32 s%d, s%d' % (SRD_A + i, SRD_Q + i))
        A('s_mov_b32 s%d, s%d' % (SRD_B + i, SRD_Q + i))
    A('s_and_b32 s%d, s%d, 1' % (sT1, sW))
    A('s_mul_i32 s%d, s%d, 3072' % (sT1, sT1))
    A('s_add_u32 s%d, s%d, s%d' % (sOffA, sQn, sT1))
    A('s_add_u32 s%d, s%d, s%d' % (sWA, sW6, sT1))
    A('s_sub_u32 s%d, 3072, s%d' % (sT1, sT1))
    A('s_add_u32 s%d, s%d, s%d' % (sOffB, sQn, sT1))
    A('s_add_u32 s%d, s%d, s%d' % (sWB, sW6, sT1))
    A('s_mov_b32 s%d, 6144' % sStride)
    for c in range(3):
        A('v_xor_b32 v%d, 80, v%d' % (vB[c], vOFF[c]))
    A('s_branch L_modeback%d%s' % (T, sfx))
    A('L_mode%d%s_kv:' % (T, sfx))
    for i in range(4):
        A('s_mov_b32 s%d, s%d' % (SRD_A + i, SRD_K + i))
        A('s_mov_b32 s%d, s%d' % (SRD_B + i, SRD_V + i))
    A('s_mov_b32 s%d, s%d' % (sOffA, sKs))
    A('s_mov_b32 s%d, s%d' % (sOffB, sVs))
    A('s_mul_i32 s%d, s%d, 3072' % (sWA, sW))
    A('s_add_u32 s%d, s%d, %d' % (sWB, sWA, TILE))
    A('s_mov_b32 s%d, %d' % (sStride, TILE))
    for c in range(3):
        A('v_mov_b32 v%d, v%d' % (vB[c], vOFF[c]))
    A('s_branch L_modeback%d%s' % (T, sfx))
    return o


def rare_code(T, b):
    o = []
    A = lambda t: o.append(I(t))
    A('L_rare%d_%d:' % (T, b))
    A('s_nop 15')
    for m in range(2):
        A('v_add_u32 v%d, s%d, v%d' % (vX[m], sKrel, vKA[m]))
    fr = TS
    st = [TMP, TMP + 4]
    free = 4 if b == 0 else 0
    r, x = P6(0) + free, P6(0) + free + 1
    dl, f = P6(1) + free, P6(1) + free + 1
    y = P6(2) + free
    for u in range(T):
        for kt in range(2):
            for ks in range(6):
                A('ds_read_b128 %s, v%d offset:%d' % (vr(fr), vX[ks % 2], kt * 6144 + (ks // 2) * 1024))
                A('s_waitcnt lgkmcnt(0)')
                A('v_mfma_f32_16x16x32_bf16 %s, %s, %s, %s' % (vr(st[kt]), vr(fr), Qr(u, ks), vr(st[kt]) if ks else '0'))
                A('s_nop 7')
        A('s_nop 15')
        s = [st[kt] + i for kt in range(2) for i in range(4)]
        A('v_max3_f32 v%d, v%d, v%d, v%d' % (r, s[0], s[1], s[2]))
        A('v_max3_f32 v%d, v%d, v%d, v%d' % (r, r, s[3], s[4]))
        A('v_max3_f32 v%d, v%d, v%d, v%d' % (r, r, s[5], s[6]))
        A('v_max_f32 v%d, v%d, v%d' % (r, r, s[7]))
        A('v_mov_b32 v%d, v%d' % (x, r))
        A('v_permlane32_swap_b32 v%d, v%d' % (x, r))
        A('v_max_f32 v%d, v%d, v%d' % (r, r, x))
        A('v_mov_b32 v%d, v%d' % (x, r))
        A('v_permlane16_swap_b32 v%d, v%d' % (x, r))
        A('v_max_f32 v%d, v%d, v%d' % (r, r, x))
        A('v_fma_f32 v%d, v%d, s%d, v%d' % (r, r, sC, vNM[u]))
        A('v_log_f32 v%d, v%d' % (y, vL[1 - b][u]))
        A('v_add_f32 v%d, 0xc1100000, v%d' % (y, y))
        A('v_max3_f32 v%d, v%d, v%d, 0' % (dl, r, y))
        A('v_sub_f32 v%d, v%d, v%d' % (vNM[u], vNM[u], dl))
        A('v_sub_f32 v%d, 0, v%d' % (f, dl))
        A('v_exp_f32 v%d, v%d' % (f, f))
        A('v_mul_f32 v%d, v%d, v%d' % (vL[1 - b][u], vL[1 - b][u], f))
        for t in range(12):
            fl, o0 = O(u, t)
            for i in range(4):
                if fl == 'v':
                    A('v_mul_f32 v%d, v%d, v%d' % (o0 + i, o0 + i, f))
                else:
                    A('v_accvgpr_read_b32 v%d, a%d' % (x, o0 + i))
                    A('v_mul_f32 v%d, v%d, v%d' % (x, x, f))
                    A('v_accvgpr_write_b32 a%d, v%d' % (o0 + i, x))
        for kt in range(2):
            for h in range(2):
                a = st[kt] + 2 * h
                A('v_fma_f32 v%d, v%d, s%d, v%d' % (a, a, sC, vNM[u]))
                A('v_fma_f32 v%d, v%d, s%d, v%d' % (a + 1, a + 1, sC, vNM[u]))
                A('v_exp_f32 v%d, v%d' % (a, a))
                A('v_exp_f32 v%d, v%d' % (a + 1, a + 1))
                A('v_cvt_pk_bf16_f32 v%d, v%d, v%d' % (Pdst(u, kt, h, b), a, a + 1))
        A('v_mfma_f32_16x16x32_bf16 %s, %s, %s, 0' % (vr(TS + 4), vr(vONES), vr(Pop(u, b))))
        A('s_nop 15')
        A('v_add_f32 v%d, v%d, v%d' % (vL[b][u], vL[1 - b][u], TS + 4))
    A('s_nop 15')
    A('s_setpc_b64 s[%d:%d]' % (sRet, sRet + 1))
    return fix_hazards(o)


def trampoline(name, T, b, krel):
    o = [I('L_rs_%s:' % name)]
    if krel == 'same':
        o.append(I('s_mov_b32 s%d, 0' % sKrel))
    else:
        d = {'prev': sD[2], 'prevA': sD[2], 'prevA5': sD[2], 'd1': sD[1]}[krel]
        o.append(I('s_sub_u32 s%d, %d, s%d' % (sKrel, SLOT, d)))
    if krel.startswith('prevA'):
        tiles = [0, 1] + ([4] if krel == 'prevA5' else [])
        o.append(I('s_waitcnt vmcnt(0) lgkmcnt(0)'))
        o += q_global(sOc, [u for u in tiles if u < T])
    o.append(I('s_call_b64 s[%d:%d], L_rare%d_%d' % (sRet, sRet + 1, T, b)))
    if krel.startswith('prevA'):
        o += q_global(sQn, tiles)
        o += qa_calc()
    o.append(I('s_branch L_ret_%s' % name))
    return fix_hazards(o)


def start_pre(T):
    o = []
    A = lambda t, **kw: o.append(I(t, **kw))
    polk = (' ' + opt.pol_kv) if opt.pol_kv else ''
    slots = [2, 3, 0, 1, 5]
    A('s_add_u32 m0, s%d, %d' % (sWA, 4 * SLOT))
    for c in range(3):
        A('buffer_load_dwordx4 v%d, s[%d:%d], s%d offen offset:%d%s lds' % (vOFF[c], SRD_K, SRD_K + 3, sOffA, c * 1024, polk), vm_id=('pos', 4))
    A('s_add_u32 s%d, s%d, %d' % (sOffA, sOffA, TILE))
    A('s_mov_b32 s%d, s%d' % (sQn, sOc))
    for u in range(T):
        A('s_mov_b32 s%d, %d' % (sT3, slots[u] * SLOT))
        d, dm = q_tile_dma(u, sT3, 0, [None], ('q0', u))
        for x in d:
            x.after = []
        o.extend(d)
    o.append(vm_wait([('q0', u) for u in range(T)] + [('pos', 4)]))
    base = [[TMP, TMP + 1], [TMP + 2, TMP + 3], [TMP + 4, TMP + 5]]
    for j in range(3):
        for m in range(2):
            A('v_add_u32 v%d, s%d, v%d' % (base[j][m], sW6, vKA[m]))
            if j:
                A('v_add_u32 v%d, %d, v%d' % (base[j][m], 2 * j * SLOT, base[j][m]))
    for u in range(T):
        sl = slots[u]
        for ks in range(6):
            A('ds_read_b128 %s, v%d offset:%d' % (Qr(u, ks), base[sl // 2][ks % 2], (sl % 2) * SLOT + (ks // 2) * 1024))
    for m in range(2):
        A('v_add_u32 v%d, %d, v%d' % (vKA[m], 4 * SLOT, vKA[m]))
    A('s_waitcnt lgkmcnt(0)')
    A('s_barrier')
    A('s_add_u32 m0, s%d, %d' % (sWA, 5 * SLOT))
    for c in range(3):
        A('buffer_load_dwordx4 v%d, s[%d:%d], s%d offen offset:%d%s lds' % (vOFF[c], SRD_K, SRD_K + 3, sOffA, c * 1024, polk), vm_id=('pos', 5))
    A('s_add_u32 s%d, s%d, %d' % (sOffA, sOffA, TILE))
    A('s_mov_b32 s%d, 0' % sWr)
    A('s_mov_b32 s%d, %d' % (sPair, 4 * SLOT))
    return o


def phase_B0(T):
    chain = [None]
    prog = []
    d, dmas = dma_group([6, 7, 8, 9], chain, 0, 16 * 12 * T)
    prog += d
    p = pair_step(sD[1])
    chain_seq(p, chain)
    prog += p
    qk, qkm, kre = qk_stream(T, 0, 'A')
    prog += qk
    return prog


PATTERNS = {
    'rot': [(0, 1, 2, 0, 1, 2)] * 10,
    'mix': [(0, 1, 2, 0, 1, 2), (0, 0, 1, 2, 2, 1), (1, 2, 0, 2, 0, 1), (2, 2, 0, 1, 1, 0), (0, 2, 1, 1, 2, 0),
            (1, 1, 2, 0, 0, 2), (2, 0, 1, 0, 1, 2), (0, 1, 1, 2, 0, 2), (2, 1, 0, 0, 2, 1), (1, 0, 2, 2, 1, 0)],
}
SOLO_PAT = (0, 1, 2, 0, 1, 2)
FINE = [54, 88, 90, 92, 94, 96, 98, 100]


def packpat(p):
    return sum(x << (2 * i) for i, x in enumerate(p))


class Blk:
    def __init__(self, name, seq):
        self.name = name
        self.seq = seq


def prof_mark(k):
    return [I('s_memtime s[92:93]'), I('s_waitcnt lgkmcnt(0)'), I('s_sub_u32 s95, s92, s94'),
            I('s_add_u32 s%d, s%d, s95' % (72 + k, 72 + k)), I('s_mov_b32 s94, s92')]


TRIPACC = [54, 55, 88, 89, 90, 91]


def trip_mark(T):
    if opt.tripprof != T:
        return []
    o = [I('s_memtime s[96:97]'), I('s_waitcnt lgkmcnt(0)'), I('s_sub_u32 s98, s96, s99'), I('s_mov_b32 s99, s96')]
    for k in range(6):
        o += [I('s_cmp_eq_u32 s%d, %d' % (sTrip, k + 1)), I('s_cselect_b32 s97, s98, 0'),
              I('s_add_u32 s%d, s%d, s97' % (TRIPACC[k], TRIPACC[k]))]
    o.append(I('s_cmp_lt_u32 s%d, 6' % sTrip))
    return o


def chain_blocks(parts):
    out = []
    for part in parts:
        kind, p = part[0], part[1]
        if kind == 's':
            out += schedule(p, history=out[-24:], verbose=opt.verbose, urgent_ok=not (len(part) > 2 and part[2] == 3) and opt.urgent)
            if opt.prof and len(part) > 2:
                out += prof_mark(part[2])
        else:
            out += p
    return out


def NW():
    return opt.wvar if opt.wshift else 1


def build():
    pro = []
    A = lambda t, **kw: pro.append(I(t, **kw))
    prologue(A, pro)
    pro.append(I('s_cmp_eq_u32 s%d, 0' % sT5))
    pro.append(I('s_cbranch_scc1 L_start4'))
    blocks = {}
    pm = lambda k: prof_mark(k) if opt.prof else []
    for T in (5, 4):
        nm = 'start%d' % T
        parts = [('r', [I('L_%s:' % nm)]), ('r', start_pre(T)), ('s', phase_B0(T)),
                 ('s', phase_C(T, [], [('pos', 5)], [('pos', 6)], 1, sD[1], True)),
                 ('s', phase_iter(T, 1, 0, True, [10], [], [('pos', 7)], 1, nm + 'a', 'd1')),
                 ('s', phase_iter(T, 0, 1, False, [11], [], [('pos', 8)], 0, nm + 'b', 'same', kstep=sD[2], vstep=sD[2], pstep=sD[2],
                                  restore_vb=True)),
                 ('r', pm(0) + [I('s_mov_b32 s%d, 0' % sTrip), I('s_branch L_loop%d' % T)])]
        blocks[nm] = Blk(nm, chain_blocks(parts))
        for w in range(NW()):
            sfx = 'w%d' % w
            nm = 'loop%d%s' % (T, sfx)
            mb = I('s_cbranch_scc1 L_mode%d%s\nL_modeback%d%s:' % (T, sfx, T, sfx))
            mb.writes.add(('scc', 0))
            first = [I('s_cmp_ge_u32 s%d, 4' % sTrip), mb]
            cnt = [I('s_add_u32 s%d, s%d, 1' % (sTrip, sTrip)),
                   I('s_cmp_eq_u32 s%d, 4' % sTrip), I('s_cselect_b32 s%d, s%d, 0' % (sT1, sAdj)),
                   I('s_add_u32 s%d, s%d, s%d' % (sOffA, sOffA, sT1)),
                   I('s_cmp_lt_u32 s%d, 6' % sTrip)]
            head = []
            if w == 0:
                head = [I('L_loop%d:' % T)]
                if opt.tripprof == T:
                    head += [I('s_memtime s[96:97]'), I('s_waitcnt lgkmcnt(0)'), I('s_mov_b32 s99, s96')]
                if NW() == 2:
                    head += [I('s_bitcmp1_b32 s%d, 1' % sW), I('s_cbranch_scc1 L_loop%dw1' % T)]
                else:
                    for k in range(1, NW()):
                        head += [I('s_cmp_eq_u32 s%d, %d' % (sW, k)), I('s_cbranch_scc1 L_loop%dw%d' % (T, k))]
            sh = w * opt.wshift
            parts = [('r', head + [I('.p2align 6'), I('L_%s:' % nm)]),
                     ('s', phase_iter(T, 1, 0, False, [4], [], [('pos', 1)], 1, nm + 'a', 'prev', tail=first, shift=sh, dyn=True)),
                     ('s', phase_iter(T, 0, 1, False, [5], [], [('pos', 2)], 0, nm + 'b', 'same', kstep=sD[2], vstep=sD[2], pstep=sD[2],
                                      tail=cnt, shift=sh, dyn=True)),
                     ('r', trip_mark(T) + [I('s_cbranch_scc1 L_%s' % nm)])]
            ex = pm(1 if T == 5 else 5) + [I('s_cmp_ge_u32 s%d, %d' % (sPn, NPASS)), I('s_cbranch_scc1 L_end%d' % T),
                                          I('s_cmp_eq_u32 s%d, 0' % sT5), I('s_cbranch_scc1 L_tr%d4' % T), I('s_branch L_tr%d5' % T)]
            parts.append(('r', ex))
            blocks[nm] = Blk(nm, chain_blocks(parts))
        nm = 'end%d' % T
        parts = [('r', [I('L_%s:' % nm)]), ('s', phase_A(T, 0, True, nm), 2), ('s', phase_B(T, 0, True), 3),
                 ('r', [I('s_branch L_fin')])]
        blocks[nm] = Blk(nm, chain_blocks(parts))
    TR = ((5, 5), (5, 4), (4, 5), (4, 4))
    for T, Tn in TR:
        nm = 'tr%d%d' % (T, Tn)
        parts = [('r', [I('L_%s:' % nm)]), ('s', phase_A(T, Tn, False, nm + 'A'), 2),
                 ('s', phase_B(T, Tn, False), 3),
                 ('s', phase_C(Tn, [] if opt.e18_in_b else [18, 19], None, [('pos', 16)], 1, sD[1], False)),
                 ('s', phase_iter(Tn, 1, 0, True, [20], [], [('pos', 17)], 1, nm + 'a', 'd1')),
                 ('s', phase_iter(Tn, 0, 1, False, [21], [], [('pos', 18)], 0, nm + 'b', 'same', kstep=sD[2], vstep=sD[2], pstep=sD[2],
                                  restore_vb=True)),
                 ('r', pm(4) + [I('s_mov_b32 s%d, 0' % sTrip), I('s_branch L_loop%d' % Tn)])]
        blocks[nm] = Blk(nm, chain_blocks(parts))

    for nm, blk in blocks.items():
        pend = []
        if not nm.startswith('start'):
            for t in range(opt.vlead):
                pend += v_reads(t, 0, 0)
        blk.seq, _ = insert_lgkm_waits(blk.seq, pending=pend)
    loops = {T: ['loop%dw%d' % (T, w) for w in range(NW())] for T in (5, 4)}
    preds = {'start5': [], 'start4': []}
    for T in (5, 4):
        preds['end%d' % T] = loops[T]
        for x in loops[T]:
            preds[x] = ['start%d' % T, x] + ['tr%d%d' % (a, b) for a, b in TR if b == T]
    for a, b in TR:
        preds['tr%d%d' % (a, b)] = loops[a]
    for nm, blk in blocks.items():
        for p in preds[nm] or [None]:
            hist = blocks[p].seq[-30:] if p else pro[-30:]
            blk.seq = fix_hazards(blk.seq, history=list(hist))
    problems = []
    for nm, blk in blocks.items():
        for p in preds[nm]:
            cat = blocks[p].seq + blk.seq
            problems += check_hazards(cat, p + '+' + nm)
            problems += verify_lgkm(cat, p + '+' + nm)
    if problems:
        for p in problems[:40]:
            print('PROBLEM', p, file=sys.stderr)
        raise SystemExit('hazards found')
    if opt.fine:
        blk = blocks[opt.fine]
        seq = blk.seq
        lo, hi = opt.fine_lo, min(opt.fine_hi, len(seq))
        pos = [lo + (hi - lo) * k // (len(FINE) - 1) for k in range(len(FINE))]
        out = []
        for i, c in enumerate(seq + [None]):
            for k, p in enumerate(pos):
                if p == i:
                    out.append(I('s_memtime s[%d:%d]' % (FINE[k], FINE[k] + 1)))
                    print('fine stamp %d at instr %d: %s' % (k, i, c.text if c else 'END'), file=sys.stderr)
            if c is not None:
                out.append(c)
        blk.seq = out
    resolve_vm(blocks)
    L = [text_of(fix_hazards(pro))]
    order = ['start5', 'start4'] + loops[5] + ['tr55', 'tr54'] + loops[4] + ['tr45', 'tr44', 'end5', 'end4']
    for nm in order:
        L.append(text_of(blocks[nm].seq))
        if opt.verbose:
            s = blocks[nm].seq
            print('%-7s %5d instrs, %4d mfma, est %6d cycles' % (nm, len(s), sum(1 for x in s if x.kind == 'mfma'), estimate(s)), file=sys.stderr)
    fin = [I('L_fin:'), I('s_waitcnt vmcnt(0)')]
    if opt.stamps:
        fin += stamp_code()
    fin += [I('L_end:'), I('s_endpgm')]
    L.append(text_of(fin))
    for T in (5, 4):
        for w in range(NW()):
            L.append(text_of(fix_hazards(mode_code(T, 'w%d' % w))))
        for b in (0, 1):
            L.append(text_of(rare_code(T, b)))
    for name, T, b, krel in TRAMP:
        L.append(text_of(trampoline(name, T, b, krel)))
    return '\n'.join(L)


def stamp_code():
    o = []
    A = lambda t: o.append(I(t))
    A('s_memrealtime s[96:97]' if not opt.fine else 's_memrealtime s[60:61]')
    A('s_memtime s[98:99]' if not opt.fine else 's_memtime s[62:63]')
    rt, ct = (96, 98) if not opt.fine else (60, 62)
    A('s_waitcnt lgkmcnt(0)')
    A('s_mov_b32 s80, s70')
    A('s_and_b32 s81, s71, 0xffff')
    A('s_mov_b32 s82, 0x100000')
    A('s_mov_b32 s83, 0x20000')
    if opt.fine:
        A('s_lshl_b32 s69, s2, 8')
        A('s_lshl_b32 s68, s%d, 6' % sW)
        A('s_add_u32 s69, s69, s68')
        A('s_add_u32 s69, s69, 0x30000')
        A('v_mov_b32 v40, s69')
        for k, r in enumerate(FINE):
            A('v_mov_b32 v42, s%d' % r)
            A('buffer_store_dword v42, v40, s[80:83], 0 offen offset:%d' % (4 * k))
            A('s_nop 1')
    A('s_cmp_eq_u32 s%d, 0' % sW)
    A('s_cbranch_scc0 L_end')
    A('s_lshl_b32 s69, s2, 6')
    A('v_mov_b32 v40, s69')
    for j, sr in enumerate((SC0, SR0, SC0, SR0, ct, rt)):
        A('v_mov_b32 v42, s%d' % sr)
        A('v_mov_b32 v43, s%d' % (sr + 1))
        A('buffer_store_dwordx2 v[42:43], v40, s[80:83], 0 offen offset:%d' % (8 * j))
        A('s_nop 1')
    if opt.tripprof:
        A('s_lshl_b32 s69, s2, 5')
        A('s_add_u32 s69, s69, 0x10000')
        A('v_mov_b32 v40, s69')
        for k in range(6):
            A('v_mov_b32 v42, s%d' % TRIPACC[k])
            A('buffer_store_dword v42, v40, s[80:83], 0 offen offset:%d' % (4 * k))
            A('s_nop 1')
    if opt.prof:
        A('s_lshl_b32 s69, s2, 5')
        A('s_add_u32 s69, s69, 0x10000')
        A('v_mov_b32 v40, s69')
        for k in range(6):
            A('v_mov_b32 v42, s%d' % (72 + k))
            A('buffer_store_dword v42, v40, s[80:83], 0 offen offset:%d' % (4 * k))
            A('s_nop 1')
    A('s_waitcnt vmcnt(0)')
    return o


SR0, SC0 = 78, 52


def t_sequences():
    progs = set()
    for pats, members in ((PATTERNS[opt.patterns], range(3)), ([SOLO_PAT], range(1))):
        for pat in pats:
            for member in members:
                for w in range(4):
                    ts = []
                    for n in range(NPASS):
                        role = (member + pat[n]) % 3
                        ts.append(5 if role == 0 or (role == 1 and w == 0) else 4)
                    progs.add((tuple(ts), (w >> 1) if NW() == 2 else w % NW()))
    return sorted(progs)


def resolve_vm(blocks):
    waits = {}
    for Ts, wv in t_sequences():
        trace = [('start%d' % Ts[0], 0, -1)]
        base = 8
        for p in range(NPASS):
            for k in range(6):
                trace.append(('loop%dw%d' % (Ts[p], wv), base + 2 * k, p))
            if p < NPASS - 1:
                trace.append(('tr%d%d' % (Ts[p], Ts[p + 1]), base, p))
            else:
                trace.append(('end%d' % Ts[p], base, p))
            base += 18
        q = []
        waited = set()
        for nm, base, p in trace:
            def res(i):
                if i[0] == 'pos':
                    return ('pos', base + i[1])
                return tuple(i) + (p,)
            for c in blocks[nm].seq:
                if c.vm_id is not None:
                    if res(c.vm_id) in waited:
                        raise SystemExit('vm id %s issued after a wait that covers it (%s in %s)' % (res(c.vm_id), c.text, nm))
                    q.append(res(c.vm_id))
                if c.kind == 'wait' and isinstance(c.tag, dict) and 'need' in c.tag:
                    idx = -1
                    waited.update(res(i) for i in c.tag['need'])
                    for n_ in [res(i) for i in c.tag['need']]:
                        where = [j for j, x in enumerate(q) if x == n_]
                        if not where:
                            if opt.nodma:
                                continue
                            raise SystemExit('vm id %s never issued (%s in %s)' % (n_, c.text, nm))
                        idx = max(idx, where[-1])
                    cnt = sum(1 for x in q[idx + 1:] if opt.vm_inorder or x[0] != 'st')
                    waits.setdefault(id(c), [c, 63])
                    waits[id(c)][1] = min(waits[id(c)][1], cnt)
    for c, n in waits.values():
        c.text = 's_waitcnt vmcnt(%d)' % n


def prologue(A, pro):
    A('s_cmp_ge_u32 s2, 256')
    A('s_cbranch_scc1 L_end')
    A('s_load_dwordx4 s[84:87], s[0:1], 0')
    A('s_load_dwordx4 s[88:91], s[0:1], 16')
    if opt.stamps:
        A('s_load_dwordx2 s[70:71], s[0:1], 40')
        A('s_memrealtime s[%d:%d]' % (SR0, SR0 + 1))
        A('s_memtime s[%d:%d]' % (SC0, SC0 + 1))
    if opt.tripprof:
        A('s_waitcnt lgkmcnt(0)')
    if opt.prof:
        for k in range(6):
            A('s_mov_b32 s%d, 0' % (72 + k))
        A('s_memtime s[92:93]')
        A('s_waitcnt lgkmcnt(0)')
        A('s_mov_b32 s94, s92')
    A('v_lshrrev_b32 v%d, 6, v0' % vX[0])
    A('v_and_b32 v0, 63, v0')
    A('v_readfirstlane_b32 s%d, v%d' % (sW, vX[0]))
    t0, t1, t2, t3, t4 = TMP, TMP + 1, TMP + 2, TMP + 3, TMP + 4
    A('v_lshrrev_b32 v%d, 3, v0' % t0)
    A('v_mul_u32_u24 v%d, 384, v%d' % (vOFF[0], t0))
    A('v_lshrrev_b32 v%d, 1, v%d' % (t1, t0))
    A('v_lshlrev_b32 v%d, 1, v%d' % (t1, t1))
    A('v_and_b32 v%d, 7, v0' % t2)
    A('v_xor_b32 v%d, v%d, v%d' % (t1, t1, t2))
    A('s_and_b32 s%d, s%d, 1' % (sT0, sW))
    A('s_mul_i32 s%d, s%d, 5' % (sT0, sT0))
    A('v_xor_b32 v%d, s%d, v%d' % (t1, sT0, t1))
    A('v_lshl_add_u32 v%d, v%d, 4, v%d' % (vOFF[0], t1, vOFF[0]))
    A('v_add_u32 v%d, %d, v%d' % (vOFF[0], BIAS, vOFF[0]))
    A('v_subrev_u32 v%d, 896, v%d' % (vOFF[1], vOFF[0]))
    A('v_subrev_u32 v%d, 1792, v%d' % (vOFF[2], vOFF[0]))
    for c in range(3):
        A('v_xor_b32 v%d, 80, v%d' % (vB[c], vOFF[c]))
    A('v_and_b32 v%d, 15, v0' % t0)
    A('v_lshrrev_b32 v%d, 4, v0' % t1)
    A('v_lshrrev_b32 v%d, 3, v%d' % (t2, t0))
    A('v_mul_u32_u24 v%d, 3072, v%d' % (vKA[0], t2))
    A('v_and_b32 v%d, 7, v%d' % (t3, t0))
    A('v_lshl_add_u32 v%d, v%d, 7, v%d' % (vKA[0], t3, vKA[0]))
    A('v_bfe_u32 v%d, v%d, 1, 2' % (t3, t0))
    A('v_lshlrev_b32 v%d, 1, v%d' % (t3, t3))
    A('v_mul_u32_u24 v%d, 5, v%d' % (t4, t2))
    A('v_xor_b32 v%d, v%d, v%d' % (t3, t3, t4))
    A('v_xor_b32 v%d, v%d, v%d' % (t3, t3, t1))
    A('v_lshl_add_u32 v%d, v%d, 4, v%d' % (vKA[0], t3, vKA[0]))
    A('v_lshrrev_b32 v%d, 1, v%d' % (t2, t1))
    A('v_mul_u32_u24 v%d, 3072, v%d' % (vVA[0], t2))
    A('v_and_b32 v%d, 1, v%d' % (t3, t1))
    A('v_bfe_u32 v%d, v0, 2, 2' % t4)
    A('v_lshl_add_u32 v%d, v%d, 2, v%d' % (t0, t3, t4))
    A('v_lshl_add_u32 v%d, v%d, 7, v%d' % (vVA[0], t0, vVA[0]))
    A('v_lshrrev_b32 v%d, 1, v%d' % (t0, t0))
    A('v_lshlrev_b32 v%d, 1, v%d' % (t0, t0))
    A('v_mul_u32_u24 v%d, 5, v%d' % (t2, t2))
    A('v_xor_b32 v%d, v%d, v%d' % (t0, t0, t2))
    A('v_bfe_u32 v%d, v0, 1, 1' % t3)
    A('v_xor_b32 v%d, v%d, v%d' % (t0, t0, t3))
    A('v_lshl_add_u32 v%d, v%d, 4, v%d' % (vVA[0], t0, vVA[0]))
    A('v_and_b32 v%d, 1, v0' % t3)
    A('v_lshl_add_u32 v%d, v%d, 3, v%d' % (vVA[0], t3, vVA[0]))
    A('v_add_u32 v%d, %d, v%d' % (vVA[0], TILE, vVA[0]))
    for i in range(4):
        A('v_mov_b32 v%d, 0x3f803f80' % (vONES + i))
    A('v_xor_b32 v%d, 64, v%d' % (vKA[1], vKA[0]))
    for m in range(1, 4):
        A('v_xor_b32 v%d, %d, v%d' % (vVA[m], 32 * m, vVA[0]))
    A('s_mov_b32 s%d, 0x3dd53b95' % sC)
    A('s_mov_b32 s%d, 0x%x' % (sThr, opt.thr))
    A('s_and_b32 s%d, s2, 7' % sT0)
    A('s_lshr_b32 s%d, s2, 3' % sT1)
    A('s_mul_i32 s%d, s%d, 43' % (sT2, sT1))
    A('s_lshr_b32 s%d, s%d, 7' % (sT2, sT2))
    A('s_mul_i32 s%d, s%d, 3' % (sT3, sT2))
    A('s_sub_u32 s%d, s%d, s%d' % (sMember, sT1, sT3))
    A('s_add_u32 s%d, s%d, 2' % (sSolo, sT1))
    A('s_lshr_b32 s%d, s%d, 5' % (sSolo, sSolo))
    A('s_mul_i32 s%d, s%d, 6' % (sT3, sT2))
    A('s_lshl_b32 s%d, s%d, 1' % (sT1, sMember))
    A('s_mul_i32 s%d, s%d, s%d' % (sT1, sT1, sSolo))
    A('s_add_u32 s%d, s%d, s%d' % (sT3, sT3, sT1))
    A('s_lshl_b32 s%d, s%d, 6' % (sT0, sT0))
    A('s_add_u32 s%d, s%d, s%d' % (sT3, sT3, sT0))
    pats = [packpat(p) for p in PATTERNS[opt.patterns]] + [packpat(SOLO_PAT)]
    w0 = sum(pats[g] << (12 * g) for g in range(5))
    w1 = sum(pats[5 + g] << (12 * g) for g in range(5))
    A('s_cmp_ge_u32 s%d, 5' % sT2)
    A('s_mov_b32 s%d, 0x%x' % (sD[0], w0 & 0xffffffff))
    A('s_mov_b32 s%d, 0x%x' % (sD[1], w0 >> 32))
    A('s_cselect_b32 s%d, 0x%x, s%d' % (sD[0], w1 & 0xffffffff, sD[0]))
    A('s_cselect_b32 s%d, 0x%x, s%d' % (sD[1], w1 >> 32, sD[1]))
    A('s_cselect_b32 s%d, 5, 0' % sD[2])
    A('s_sub_u32 s%d, s%d, s%d' % (sD[2], sT2, sD[2]))
    A('s_mul_i32 s%d, s%d, 12' % (sD[2], sD[2]))
    A('s_lshr_b64 s[%d:%d], s[%d:%d], s%d' % (sD[0], sD[0] + 1, sD[0], sD[0] + 1, sD[2]))
    A('s_and_b32 s%d, s%d, 0xfff' % (sPat, sD[0]))
    A('s_cmp_lg_u32 s%d, 0' % sSolo)
    A('s_cselect_b32 s%d, 0x%x, s%d' % (sPat, packpat(SOLO_PAT), sPat))
    A('s_cmp_lg_u32 s%d, 0' % sSolo)
    A('s_cselect_b32 s%d, 0, s%d' % (sMember, sMember))
    A('s_cselect_b32 s%d, 2, 6' % sT1)
    A('s_add_u32 s%d, s%d, s%d' % (sT1, sT1, sT3))
    A('s_mul_i32 s%d, s%d, %d' % (sT1, sT1, KHEAD))
    A('s_mul_i32 s%d, s%d, %d' % (sHeadQ, sT3, QHEAD))
    A('s_mul_i32 s%d, s%d, %d' % (sT3, sT3, KHEAD))
    A('s_waitcnt lgkmcnt(0)')
    for srd, p in ((SRD_Q, 84), (SRD_K, 86), (SRD_V, 88)):
        A('s_sub_u32 s%d, s%d, %d' % (srd, p, BIAS))
        A('s_subb_u32 s%d, s%d, 0' % (srd + 1, p + 1))
        A('s_and_b32 s%d, s%d, 0xffff' % (srd + 1, srd + 1))
        A('s_mov_b32 s%d, 0x20000' % (srd + 3))
    A('s_mov_b32 s%d, %d' % (SRD_Q + 2, (QBYTES + BIAS) if not opt.noq else 0))
    A('s_add_u32 s%d, s%d, %d' % (SRD_K + 2, sT1, BIAS))
    A('s_mov_b32 s%d, s%d' % (SRD_V + 2, SRD_K + 2))
    A('s_mov_b32 s%d, s90' % SRD_O)
    A('s_and_b32 s%d, s91, 0xffff' % (SRD_O + 1))
    A('s_mov_b32 s%d, %d' % (SRD_O + 2, QBYTES))
    A('s_mov_b32 s%d, 0x20000' % (SRD_O + 3))
    for i in range(4):
        A('s_mov_b32 s%d, s%d' % (SRD_A + i, SRD_K + i))
        A('s_mov_b32 s%d, s%d' % (SRD_B + i, SRD_V + i))
    A('s_mul_i32 s%d, s%d, 3072' % (sWA, sW))
    A('s_add_u32 s%d, s%d, %d' % (sWB, sWA, TILE))
    A('s_mul_i32 s%d, s%d, 6144' % (sW6, sW))
    A('s_add_u32 s%d, s%d, s%d' % (sOffA, sT3, sWA))
    A('s_mov_b32 s%d, s%d' % (sOffB, sOffA))
    A('s_mov_b32 s%d, %d' % (sStride, TILE))
    A('s_mov_b32 s%d, 0' % sPn)
    pro += role_calc(sOc)
    if opt.tripprof:
        for r in TRIPACC:
            A('s_mov_b32 s%d, 0' % r)


HEADER = """; Kernarg layout (48 bytes): q, k, v, out, debug, ws
; @launch grid=(256,1,1) block=(256,1,1) lds=%d
.amdgcn_target "amdgcn-amd-amdhsa--gfx950"
.text
.globl %s
.p2align 8
.type %s,@function
%s:
"""
FOOTER = """
.section .rodata,"a"
.p2align 6
.amdhsa_kernel %s
  .amdhsa_next_free_vgpr 512
  .amdhsa_next_free_sgpr 102
  .amdhsa_accum_offset 256
  .amdhsa_group_segment_fixed_size 0
  .amdhsa_kernarg_size 48
  .amdhsa_user_sgpr_count 2
  .amdhsa_user_sgpr_kernarg_segment_ptr 1
  .amdhsa_system_sgpr_workgroup_id_x 1
.end_amdhsa_kernel
"""


def main():
    ap = argparse.ArgumentParser()
    ap.add_argument('-o', default='standalone__gqa_softmax__near_ridge.s')
    ap.add_argument('--set', action='append', default=[])
    a = ap.parse_args()
    for kv in a.set:
        k, v = kv.split('=', 1)
        cur = getattr(opt, k)
        if isinstance(cur, bool):
            v = v not in ('0', 'False', '')
        elif isinstance(cur, int):
            v = int(v, 0)
        elif isinstance(cur, float):
            v = float(v)
        setattr(opt, k, v)
    asmlib.LDS_LAT = opt.lds_lat
    asmlib.WAIT_LAT = opt.wait_lat
    asmlib.LDSW = opt.ldsw
    asmlib.STGAP = opt.stgap
    body = build()
    txt = HEADER % (LDS_BYTES, NAME, NAME, NAME) + body + FOOTER % NAME
    open(a.o, 'w').write(txt)
    print('wrote %s (%d bytes)' % (a.o, len(txt)), file=sys.stderr)


if __name__ == '__main__':
    main()
```
